```python
import torch

def _softmax(x, axis=-1):
    return torch.softmax(x, dim=axis)
def _gelu(x):
    return torch.nn.functional.gelu(x, approximate="tanh")
def _silu(x):
    return torch.nn.functional.silu(x)
def _sigmoid(x):
    return torch.sigmoid(x)
def _layernorm(x, axis=-1, eps=1e-5):
    m = x.mean(dim=axis, keepdim=True)
    v = x.var(dim=axis, keepdim=True, unbiased=False)
    return (x - m) / torch.sqrt(v + eps)
def _scatter_add(tgt, idx, src, axis=0):
    return tgt.clone().index_add_(axis, idx, src)
def _segment_sum(src, seg, n):
    out = torch.zeros((n,) + src.shape[1:], dtype=src.dtype)
    return out.index_add_(0, seg, src)
def _pad(x, pw):
    flat = tuple(v for pair in reversed(pw) for v in pair)
    return torch.nn.functional.pad(x, flat)

kernel_name = 'concat_heads__ssm_conv_s4d__ssm_conv_s4__prompt'

def setup_inputs():

    _w = (lambda a: (lambda t: t.to(torch.bfloat16) if t.is_floating_point() else t)(torch.as_tensor(a)))
    def _A_setup():
        Bsz, L, D, N = 1, 2048, 512, 128
        return {
            "u": _w((lambda *s: torch.randn(*s, dtype=torch.bfloat16) * 0.05)(Bsz, L, D)),
            "log_A_real": _w((lambda *s: torch.randn(*s, dtype=torch.bfloat16) * 6.4)(D, N) * 0.5),
            "A_imag": _w((lambda *s: torch.randn(*s, dtype=torch.bfloat16) * 0.05)(D, N) * 3.14),
            "C_real": _w((lambda *s: torch.randn(*s, dtype=torch.bfloat16) * 0.05)(D, N) / N ** 0.5),
            "C_imag": _w((lambda *s: torch.randn(*s, dtype=torch.bfloat16) * 0.05)(D, N) / N ** 0.5),
            "log_dt": _w((lambda *s: torch.randn(*s, dtype=torch.bfloat16) * 0.05)(D) * 0.5 - 4.0),
            "D_skip": _w((lambda *s: torch.randn(*s, dtype=torch.bfloat16) * 0.05)(D)),
        }
    _A_in = _A_setup()

    def _B_setup():
        B, L, D, N = 1, 2048, 512, 128
        A_re = -(lambda _x: torch.exp(torch.as_tensor(_x)))((lambda *s: torch.randn(*s, dtype=torch.bfloat16) * 6.4)(D, N))
        A_im = torch.pi * (lambda *s: torch.randn(*s, dtype=torch.bfloat16) * 0.05)(D, N)
        B_re = (lambda *s: torch.randn(*s, dtype=torch.bfloat16) * 0.1)(D, N)
        B_im = (lambda *s: torch.randn(*s, dtype=torch.bfloat16) * 0.1)(D, N)
        C_re = (lambda *s: torch.randn(*s, dtype=torch.bfloat16) * 0.1)(D, N)
        C_im = (lambda *s: torch.randn(*s, dtype=torch.bfloat16) * 0.1)(D, N)
        log_dt = (lambda *s: torch.randn(*s, dtype=torch.bfloat16) * 0.05)(D) * 0.5 - 4.0
        Dskip = (lambda *s: torch.randn(*s, dtype=torch.bfloat16) * 0.05)(D)
        return {
            "u": _w((lambda *s: torch.randn(*s, dtype=torch.bfloat16) * 0.05)(B, L, D)),
            "A_re": _w(A_re),
            "A_im": _w(A_im),
            "B_re": _w(B_re),
            "B_im": _w(B_im),
            "C_re": _w(C_re),
            "C_im": _w(C_im),
            "log_dt": _w(log_dt),
            "Dskip": _w(Dskip),
        }
    _B_in = _B_setup()

    return {
        "A_u": _A_in["u"],
        "A_log_A_real": _A_in["log_A_real"],
        "A_A_imag": _A_in["A_imag"],
        "A_C_real": _A_in["C_real"],
        "A_C_imag": _A_in["C_imag"],
        "A_log_dt": _A_in["log_dt"],
        "A_D_skip": _A_in["D_skip"],
        "B_u": _B_in["u"],
        "B_A_re": _B_in["A_re"],
        "B_A_im": _B_in["A_im"],
        "B_B_re": _B_in["B_re"],
        "B_B_im": _B_in["B_im"],
        "B_C_re": _B_in["C_re"],
        "B_C_im": _B_in["C_im"],
        "B_log_dt": _B_in["log_dt"],
        "B_Dskip": _B_in["Dskip"],
    }

def reference(A_u, A_log_A_real, A_A_imag, A_C_real, A_C_imag, A_log_dt, A_D_skip, B_u, B_A_re, B_A_im, B_B_re, B_B_im, B_C_re, B_C_im, B_log_dt, B_Dskip):
    def _A_ref(u, log_A_real, A_imag, C_real, C_imag, log_dt, D_skip):
        L = u.shape[1]
        dt = torch.exp(log_dt)
        A = -torch.exp(log_A_real) + 1j * A_imag
        C = (C_real + 1j * C_imag) * dt[:, None]
        pos = (lambda x, dt: x.to(dt))(torch.arange(L), log_dt.dtype)
        P = torch.exp((A * dt[:, None])[:, :, None] * pos[None, None, :])
        K = 2.0 * torch.einsum("dn,dnl->dl", C, P).real
        L2 = 2 * L
        u_t = (lambda x, *d: x.permute(*d))(u, 0, 2, 1)
        Kf = (lambda x, *a, **k: torch.fft.rfft(x.float(), *a, **k))(K, L2)
        Uf = (lambda x, *a, **k: torch.fft.rfft(x.float(), *a, **k))(u_t, L2)
        y = (lambda x, *a, **k: torch.fft.irfft(x, *a, **k).to(torch.bfloat16))(Uf * Kf[None, :, :], L2)[:, :, :L]
        y = (lambda x, *d: x.permute(*d))(y, 0, 2, 1)
        return y + u * D_skip[None, None, :]

    def _B_ref(u, A_re, A_im, B_re, B_im, C_re, C_im, log_dt, Dskip):
        Bsz, L, D = u.shape
        dt = torch.exp(log_dt)[:, None]
        A = A_re + 1j * A_im
        Bc = B_re + 1j * B_im
        Cc = C_re + 1j * C_im
        logdA = dt * A
        dB = dt * Bc
        l = (lambda x, dt: x.to(dt))(torch.arange(L), A_re.dtype)
        P = torch.exp(logdA[:, :, None] * l[None, None, :])
        K = torch.einsum("dn,dnl,dn->dl", Cc, P, dB).real
        L2 = 2 * L
        Kp = _pad(K, ((0, 0), (0, L)))
        up = (lambda x, *d: x.permute(*d))(u, 0, 2, 1)
        up = _pad(up, ((0, 0), (0, 0), (0, L)))
        Kf = (lambda x, axes=(-2,-1): torch.fft.rfft2(x.float(), dim=axes))(Kp[:, None, :], axes=(-2, -1))
        Uf = (lambda x, axes=(-2,-1): torch.fft.rfft2(x.float(), dim=axes))(up[:, :, None, :], axes=(-2, -1))
        Yf = Uf * Kf[None, :, :, :]
        y = (lambda x, s, axes=(-2,-1): torch.fft.irfft2(x, s=s, dim=axes).to(torch.bfloat16))(Yf, (1, L2), axes=(-2, -1))[:, :, 0, :L]
        y = (lambda x, *d: x.permute(*d))(y, 0, 2, 1) + u * Dskip[None, None, :]
        return y

    a = _A_ref(A_u, A_log_A_real, A_A_imag, A_C_real, A_C_imag, A_log_dt, A_D_skip)
    b = _B_ref(B_u, B_A_re, B_A_im, B_B_re, B_B_im, B_C_re, B_C_im, B_log_dt, B_Dskip)
    return torch.concatenate([a, b], axis=-1)
```

```python
import re
TRANS = ("v_exp_f32","v_log_f32","v_rcp_f32","v_rsq_f32","v_sqrt_f32","v_sin_f32","v_cos_f32")
def regs_of(tok):
    tok = tok.strip()
    tok = re.sub(r"^-", "", tok); tok = re.sub(r"^abs\((.*)\)$", r"\1", tok); tok = tok.strip("|")
    m = re.fullmatch(r"([vsa])(\d+)", tok)
    if m: return [(m.group(1), int(m.group(2)))]
    m = re.fullmatch(r"([vsa])\[(\d+):(\d+)\]", tok)
    if m: return [(m.group(1), i) for i in range(int(m.group(2)), int(m.group(3))+1)]
    if tok == "vcc": return [("s","vcc")]
    if tok == "m0": return [("s","m0")]
    if tok == "exec": return [("s","exec")]
    return []
def split_ops(s):
    out, depth, cur = [], 0, ""
    for ch in s:
        if ch in "[(": depth += 1
        if ch in "])": depth -= 1
        if ch == "," and depth == 0: out.append(cur); cur = ""
        else: cur += ch
    out.append(cur)
    return [o.strip() for o in out]
class Ins:
    pass
class Asm:
    def __init__(self):
        self.lines = []
        self.reset_state()
        self.nnop = 0
    def reset_state(self):
        self.hist = []
        self.lgkm = []
        self.vm = []
        self.smem = []
    def raw(self, s): self.lines.append(s)
    def label(self, name): self.lines.append(name + ":")
    def comment(self, s): self.lines.append("    ; " + s)
    def parse(self, text):
        t = text.strip()
        mn, _, rest = t.partition(" ")
        i = Ins(); i.mn = mn; i.text = t
        ops = split_ops(rest) if rest else []
        mods = ""
        if ops:
            last = ops[-1]
            m = re.match(r"^(\S+)(\s+.*)?$", last)
            ops[-1] = m.group(1); mods = m.group(2) or ""
        i.mods = mods
        R = [regs_of(o) for o in ops]
        flat = lambda L: [r for x in L for r in x]
        i.kind = "other"; i.dst = []; i.src = []; i.srcC = []; i.passes = 0
        if mn.startswith("v_mfma"):
            i.kind = "mfma"; i.dst = R[0]; i.src = R[1] + R[2]; i.srcC = R[3]
            i.passes = 8 if "32x32" in mn else 4
        elif mn.startswith("ds_read") or mn.startswith("ds_bpermute"):
            i.kind = "ds"; i.dst = R[0]; i.src = flat(R[1:])
        elif mn.startswith("ds_write"):
            i.kind = "ds"; i.src = flat(R)
            if "addtid" in mn: i.src = i.src + [("s","m0")]
        elif mn.startswith("global_load") or mn.startswith("buffer_load"):
            i.kind = "vmem"; i.dst = R[0]; i.src = flat(R[1:])
        elif mn.startswith("global_store") or mn.startswith("buffer_store"):
            i.kind = "vmem"; i.src = flat(R)
            i.wide = R[1] if ("x4" in mn or "x3" in mn) and mn.startswith("global") else (R[0] if ("x4" in mn or "x3" in mn) else [])
        elif mn.startswith("buffer_wbl2") or mn.startswith("buffer_inv"):
            i.kind = "vmem"
        elif mn.startswith("s_load") or mn.startswith("s_memtime") or mn.startswith("s_memrealtime"):
            i.kind = "smem"; i.dst = R[0]; i.src = flat(R[1:])
        elif mn.startswith("v_"):
            i.kind = "valu"; i.dst = R[0]; i.src = flat(R[1:])
            if mn.startswith("v_fmac") or "dpp" in mn or "sdwa" in mn or mn.startswith("v_writelane") or mn.startswith("v_permlane"):
                i.src = i.src + R[0]
            if mn.startswith("v_permlane"): i.dst = R[0] + R[1]
            if "_co_" in mn: i.dst = R[0] + R[1]
        elif mn in ("s_waitcnt","s_nop","s_barrier","s_branch","s_endpgm","s_setprio","s_sleep") or mn.startswith("s_cbranch"):
            i.kind = "sopp"
        elif mn.startswith("s_cmp"):
            i.kind = "salu"; i.src = flat(R)
        elif mn.startswith("s_"):
            i.kind = "salu"; i.dst = R[0]; i.src = flat(R[1:])
            if "saveexec" in mn: i.dst = i.dst + [("s","exec")]
        else:
            raise Exception("unknown instr " + t)
        i.trans = mn.replace("_e32","").replace("_e64","") in TRANS
        i.dpp = "dpp" in mn
        return i
    def need_states(self, p, c):
        n = 0
        pd, cs, cd, cC = set(p.dst), set(c.src), set(c.dst), set(c.srcC)
        vd = {r for r in pd if r[0] in "va"}; sd = {r for r in pd if r[0] == "s"}
        if p.kind == "valu":
            if c.kind == "mfma" and vd & (cs | cC): n = max(n, 2)
            if c.kind == "valu":
                if p.trans and not c.trans and vd & cs: n = max(n, 1)
                if c.dpp and vd & cs: n = max(n, 2)
                if c.mn.startswith("v_readlane") or c.mn.startswith("v_readfirstlane"):
                    if vd & cs: n = max(n, 1)
                    if sd & cs: n = max(n, 4)
                if c.mn.startswith("v_writelane") and sd & cs: n = max(n, 4)
                if c.mn.startswith("v_permlane") and vd & cs: n = max(n, 2)
                if sd & cs: n = max(n, 2)
                if ("sdwa" in p.mn) and vd & (cs | cd): n = max(n, 1)
            if c.kind == "vmem" and sd & cs: n = max(n, 5)
            if c.kind in ("salu","smem") and sd & cs: n = max(n, 4)
        if p.kind == "mfma":
            big = {4: 8, 8: 12}[p.passes]
            if c.kind == "mfma":
                if pd & cs: n = max(n, big)
                if pd & cC and not (p.dst == c.srcC and p.passes == c.passes): n = max(n, big - 2)
                if pd & cd and not (p.dst == c.srcC and p.passes == c.passes): n = max(n, big - 2)
            elif c.kind in ("valu","ds","vmem"):
                if pd & (cs | cd): n = max(n, big)
                if c.kind == "valu" and set(p.srcC) & cd: n = max(n, {4: 3, 8: 7}[p.passes])
        if p.kind == "salu" and ("s","m0") in pd and ("s","m0") in cs: n = max(n, 1)
        if p.kind == "vmem" and getattr(p, "wide", None) and set(p.wide) & cd: n = max(n, 2)
        return n
    def wait(self, vm=None, lgkm=None):
        parts = []
        if vm is not None:
            parts.append(f"vmcnt({vm})"); self.vm = self.vm[max(0,len(self.vm)-vm):] if vm else []
        if lgkm is not None:
            parts.append(f"lgkmcnt({lgkm})")
            self.lgkm = self.lgkm[max(0,len(self.lgkm)-lgkm):] if lgkm else []
            if lgkm == 0: self.smem = []
        self._put(self.parse("s_waitcnt " + " ".join(parts)))
    def _put(self, i, states=1):
        self.lines.append("    " + i.text)
        self.hist.append((i, states)); self.hist = self.hist[-24:]
    def __call__(self, text):
        for t in text.strip().split("\n"):
            if t.strip(): self.emit(t)
    def emit(self, text):
        i = self.parse(text)
        touch = set(i.src) | set(i.dst) | set(i.srcC)
        vmw = lw = None
        for k, d in enumerate(self.vm):
            if d & touch: vmw = len(self.vm) - 1 - k
        for k, d in enumerate(self.lgkm):
            if d & touch: lw = len(self.lgkm) - 1 - k
        if any(r in touch for r in self.smem): lw = 0
        if lw is not None and self.smem: lw = 0
        if lw is not None: lw = min(lw, 15)
        if vmw is not None: vmw = min(vmw, 63)
        if vmw is not None or lw is not None: self.wait(vmw, lw)
        dist = 0; need = 0
        for p, st in reversed(self.hist):
            need = max(need, self.need_states(p, i) - dist)
            dist += st
        if need > 0:
            self.nnop += need
            self._put(self.parse(f"s_nop {need-1}"), need)
        st = 1
        if i.mn == "s_nop": st = int(text.split()[1]) + 1
        self._put(i, st)
        if i.kind == "ds": self.lgkm.append(set(i.dst))
        if i.kind == "vmem": self.vm.append(set(i.dst))
        if i.kind == "smem": self.smem += i.dst
    def text(self): return "\n".join(self.lines) + "\n"
class Regs:
    def __init__(self, start=0, limit=256): self.n = start; self.limit = limit; self.hi = start
    def alloc(self, n=1, align=None):
        if align is None: align = 2 if n > 1 else 1
        self.n = (self.n + align - 1)//align*align
        r = self.n; self.n += n; self.hi = max(self.hi, self.n)
        assert self.n <= self.limit, "out of registers"
        return r
def v(r, n=1): return f"v{r}" if n == 1 else f"v[{r}:{r+n-1}]"
def s(r, n=1): return f"s{r}" if n == 1 else f"s[{r}:{r+n-1}]"
```

```python
import sys, struct
from asmfw import *
KN = "concat_heads__ssm_conv_s4d__ssm_conv_s4__prompt_kernel"
def f2u(x): return struct.unpack("<I", struct.pack("<f", x))[0]
LOG2E = 1.4426950408889634
U0, US = 0, 4608
BOXT = 18432
KQ0, KQS = 20480, 5248
G4O, G8O = 4384, 4896
EV0, EVS = 41472, 28736
LDS_BYTES = EV0 + 4*EVS
EVR = 528
ALPHAS = [0,1,2,3,4,5,6,7,8,256,258,260,262,264,516,520,772,776,1032,1288,1544,1800]
MROW = {0:0,1:1,2:2,3:3, 4:256,5:256,6:258,7:260, 8:4,9:5,10:6,11:7, 12:260,13:260,14:262,15:264,
        16:516,17:520,18:1032,19:1544, 20:772,21:776,22:1288,23:1800, 24:8, 28:264}
SROW = {}
for row in sorted(MROW):
    SROW.setdefault(MROW[row], row)
SROW[1288] = 5; SROW[1800] = 12; SROW[8] = 13
assert sorted(SROW.values()) == list(range(22))
def gen(stamps=False, prefetch=True):
    a = Asm()
    stamp_n = [0]
    def stamp():
        if stamps:
            k = stamp_n[0]; stamp_n[0] += 1
            a.raw(f"    s_memtime s[{60+2*k}:{61+2*k}]")
            a.raw("    s_waitcnt lgkmcnt(0)"); a.raw("    s_nop 0"); a.lgkm = []; a.smem = []
    def stamps_out(tmp):
        if stamps:
            a(f"s_load_dwordx2 s[32:33], s[0:1], 144")
            a(f"s_memrealtime s[56:57]")
            a(f"s_lshl_b32 s5, s2, 3\ns_add_u32 s5, s5, s4\ns_lshl_b32 s5, s5, 7\nv_mov_b32 {v(tmp)}, s5")
            a.wait(vm=0, lgkm=0)
            for k in range(stamp_n[0]):
                a(f"s_sub_u32 s5, s{60+2*k}, s58\nv_mov_b32 {v(tmp+1)}, s5\nglobal_store_dword {v(tmp)}, {v(tmp+1)}, s[32:33] offset:{4*k}")
            a(f"v_mov_b32 {v(tmp+1)}, s54\nglobal_store_dword {v(tmp)}, {v(tmp+1)}, s[32:33] offset:120")
            a(f"v_mov_b32 {v(tmp+1)}, s56\nglobal_store_dword {v(tmp)}, {v(tmp+1)}, s[32:33] offset:124")
    if stamps:
        a.raw("    s_memrealtime s[54:55]\n    s_memtime s[58:59]")
    a("s_cmp_ge_u32 s2, 0x100\ns_cbranch_scc1 Lend")
    a("s_bfe_u32 s6, s2, 0x10002")
    a("s_mul_i32 s5, s6, 56")
    a("s_load_dwordx16 s[8:23], s[0:1], s5")
    a("s_load_dwordx4 s[24:27], s[0:1], 120")
    a("s_and_b32 s3, s2, 7\ns_lshl_b32 s3, s3, 5\ns_lshr_b32 s5, s2, 3\ns_or_b32 s3, s3, s5")
    a("v_lshrrev_b32 v1, 6, v0\nv_and_b32 v2, 63, v0\nv_readfirstlane_b32 s4, v1")
    a("s_and_b32 s7, s3, 127")
    a("s_cmp_ge_u32 s4, 4\ns_cbranch_scc1 Lio")
    entry_state = (list(a.hist), list(a.smem))
    R = Regs(3)
    lane = 2
    aEVW, aEVA, aEVB, aQW, aQR0, aQR1, aG4W, aG4R, aG8W, aG8R, aSP, aU, aYW, aBX = [R.alloc() for _ in range(14)]
    vD = R.alloc()
    base_n = R.n
    T = Regs(base_n)
    vPO, vSO = T.alloc(), T.alloc()
    p = [T.alloc() for _ in range(6)]; pdt = T.alloc(); pD = T.alloc()
    a(f"s_lshl_b32 s5, s7, 2\ns_add_u32 s5, s5, s4")
    a(f"s_lshl_b32 s28, s5, 8\nv_lshl_add_u32 {v(vPO)}, {v(lane)}, 2, s28")
    a(f"s_lshl_b32 s28, s5, 1\nv_mov_b32 {v(vSO)}, s28")
    a(f"s_cmp_eq_u32 s6, 0")
    a.wait(lgkm=0)
    a("s_cselect_b64 s[22:23], s[18:19], s[22:23]")
    a("s_cselect_b64 s[24:25], s[20:21], s[24:25]")
    a(f"global_load_ushort {v(pdt)}, {v(vSO)}, s[22:23]")
    for k in range(4):
        a(f"global_load_dword {v(p[k])}, {v(vPO)}, s[{10+2*k}:{11+2*k}]")
    a(f"global_load_ushort {v(pD)}, {v(vSO)}, s[24:25]")
    a("s_cbranch_scc1 LnoB")
    a(f"global_load_dword {v(p[4])}, {v(vPO)}, s[18:19]")
    a(f"global_load_dword {v(p[5])}, {v(vPO)}, s[20:21]")
    a.label("LnoB")
    stamp()
    t0, t1, t2, t3, vr, vq = [T.alloc() for _ in range(6)]
    z4 = T.alloc(4)
    a(f"s_mul_i32 s28, s4, {EVS}\ns_add_u32 s28, s28, {EV0}")
    a(f"s_mul_i32 s29, s4, {KQS}\ns_add_u32 s29, s29, {KQ0}")
    a(f"s_mul_i32 s30, s4, {US}")
    a(f"v_and_b32 {v(vr)}, 15, {v(lane)}\nv_lshrrev_b32 {v(vq)}, 4, {v(lane)}")
    for k in range(4): a(f"v_mov_b32 {v(z4+k)}, 0")
    a(f"v_lshl_add_u32 {v(t0)}, {v(lane)}, 4, s29")
    for k in range(5): a(f"ds_write_b128 {v(t0)}, {v(z4,4)} offset:{1024*k}")
    a(f"v_lshl_add_u32 {v(aG4W)}, {v(lane)}, 2, s29")
    a(f"ds_write_b32 {v(aG4W)}, {v(z4)} offset:{KQS-256}")
    a(f"v_lshl_add_u32 {v(t0)}, {v(lane)}, 3, s30")
    a(f"ds_write_b64 {v(t0)}, {v(z4,2)}")
    a(f"v_lshl_add_u32 {v(aEVW)}, {v(lane)}, 3, s28")
    a(f"v_mov_b32 {v(z4)}, 0x3f80\nv_mov_b32 {v(z4+1)}, 0x3f80")
    a(f"ds_write_b64 {v(aEVW)}, {v(z4,2)} offset:{22*EVR}")
    a(f"s_add_u32 s5, s4, 33\nv_subrev_u32 {v(t0)}, s5, {v(lane)}\nv_cvt_f32_i32 {v(t0)}, {v(t0)}")
    a(f"s_add_u32 s5, s4, 2\nv_cvt_f32_u32 {v(t1)}, s5")
    for i in range(4):
        if i: a(f"v_add_f32 {v(t0)}, -1.0, {v(t0)}")
        a(f"v_sub_f32_e64 {v(z4+i)}, {v(t1)}, abs({v(t0)}) clamp")
    a(f"v_cvt_pk_bf16_f32 {v(z4)}, {v(z4)}, {v(z4+1)}\nv_cvt_pk_bf16_f32 {v(z4+1)}, {v(z4+2)}, {v(z4+3)}")
    a(f"s_lshl_b32 s5, s4, 9\nv_lshl_add_u32 {v(t0)}, {v(lane)}, 3, s5")
    a(f"ds_write_b64 {v(t0)}, {v(z4,2)} offset:{BOXT}")
    a(f"v_and_b32 {v(t0)}, 31, {v(lane)}\nv_lshrrev_b32 {v(t1)}, 5, {v(lane)}\nv_lshl_add_u32 {v(t1)}, {v(t1)}, 4, s28")
    a(f"s_movk_i32 s5, {EVR}")
    a(f"v_mad_u32_u24 {v(aEVB)}, {v(t0)}, s5, {v(t1)}")
    for row in range(32):
        if row in MROW and SROW[MROW[row]] != row:
            a(f"v_writelane_b32 {v(t0)}, {SROW[MROW[row]]}, {row}\nv_writelane_b32 {v(t0)}, {SROW[MROW[row]]}, {row+32}")
    a(f"v_mad_u32_u24 {v(aEVA)}, {v(t0)}, s5, {v(t1)}")
    a(f"v_lshl_add_u32 {v(aQW)}, {v(lane)}, 3, s29")
    a(f"s_movk_i32 s5, 544")
    a(f"v_and_b32 {v(t0)}, 7, {v(lane)}\nv_lshrrev_b32 {v(t1)}, 3, {v(vr)}\nv_sub_u32 {v(t1)}, {v(t1)}, {v(vq)}\nv_add_u32 {v(t1)}, 4, {v(t1)}")
    a(f"v_lshl_add_u32 {v(t1)}, {v(t1)}, 3, s29\nv_mad_u32_u24 {v(aQR0)}, {v(t0)}, s5, {v(t1)}")
    a(f"v_xor_b32 {v(t0)}, 4, {v(t0)}\nv_add_u32 {v(t1)}, 28, {v(vr)}\nv_lshrrev_b32 {v(t1)}, 3, {v(t1)}\nv_sub_u32 {v(t1)}, {v(t1)}, {v(vq)}")
    a(f"v_lshl_add_u32 {v(t1)}, {v(t1)}, 3, s29\nv_mad_u32_u24 {v(aQR1)}, {v(t0)}, s5, {v(t1)}")
    a(f"v_lshrrev_b32 {v(t0)}, 1, {v(vq)}\nv_and_b32 {v(t0)}, {v(t0)}, {v(vq)}")
    a(f"v_lshrrev_b32 {v(t1)}, 2, {v(vr)}\nv_min_u32 {v(t1)}, 2, {v(t1)}\nv_and_b32 {v(t2)}, 3, {v(lane)}")
    a(f"v_mad_u32_u24 {v(t1)}, {v(t1)}, {v(t0)}, {v(t2)}")
    a(f"v_add_u32 {v(t0)}, {v(t0)}, {v(vq)}\nv_lshl_add_u32 {v(t0)}, {v(t0)}, 7, s29\nv_lshl_add_u32 {v(t0)}, {v(t2)}, 1, {v(t0)}")
    a(f"v_mad_u32_u24 {v(aSP)}, {v(t1)}, s5, {v(t0)}")
    a(f"v_lshl_add_u32 {v(aG8W)}, {v(lane)}, 1, s29")
    a(f"v_lshlrev_b32 {v(t0)}, 2, {v(vq)}\nv_sub_u32 {v(t0)}, {v(vr)}, {v(t0)}\nv_add_u32 {v(t0)}, 12, {v(t0)}")
    a(f"v_lshl_add_u32 {v(aG4R)}, {v(t0)}, 3, s29")
    a(f"s_add_u32 s5, s29, {G8O}\nv_lshl_add_u32 {v(aG8R)}, {v(t0)}, 2, s5")
    a(f"v_lshl_add_u32 {v(t0)}, {v(vr)}, 1, {v(vq)}\nv_lshl_add_u32 {v(aU)}, {v(t0)}, 4, s30")
    a(f"v_mul_u32_u24 {v(t0)}, 18, {v(vq)}\nv_add_u32 {v(t0)}, {v(t0)}, {v(vr)}\nv_lshl_add_u32 {v(aYW)}, {v(t0)}, 3, s28")
    a(f"v_lshlrev_b32 {v(t0)}, 3, {v(vq)}\nv_sub_u32 {v(t0)}, {v(vr)}, {v(t0)}\nv_add_u32 {v(t0)}, 24, {v(t0)}\nv_lshlrev_b32 {v(aBX)}, 3, {v(t0)}")
    a(f"s_mov_b32 s34, {hex(f2u(LOG2E))}\ns_mov_b32 s35, 0xffff0000")
    a.wait(vm=0)
    stamp()
    are, aim, lam, nu, lam8, nu8 = [T.alloc(2) for _ in range(6)]
    kk = T.alloc(2); kk8 = T.alloc(2); dts = T.alloc(2)
    A = [[T.alloc(2) for m in range(2)] for k in range(9)]
    w1 = [T.alloc(2) for m in range(2)]; w8 = [T.alloc(2) for m in range(2)]
    xb = [[T.alloc(2) for m in range(2)] for k in range(2)]
    tm = [T.alloc(2) for m in range(2)]; ee = T.alloc(2)
    dd = [T.alloc(2) for k in range(2)]
    def unpack(dlo, dhi, src):
        a(f"v_lshlrev_b32 {v(dlo)}, 16, {v(src)}\nv_and_b32 {v(dhi)}, s35, {v(src)}")
    def cmul2(dst, x, w, conj=False):
        for m in range(2): a(f"v_pk_mul_f32 {v(tm[m],2)}, {v(x[m],2)}, {v(w[m],2)} op_sel_hi:[1,0]")
        ng = "neg_hi:[1,0,0]" if conj else "neg_lo:[1,0,0]"
        for m in range(2): a(f"v_pk_fma_f32 {v(dst[m],2)}, {v(x[m],2)}, {v(w[m],2)}, {v(tm[m],2)} op_sel:[1,1,0] op_sel_hi:[0,1,1] {ng}")
    a(f"v_lshlrev_b32 {v(t0)}, 16, {v(pdt)}\nv_mul_f32 {v(t0)}, s34, {v(t0)}\nv_exp_f32 {v(t0)}, {v(t0)}")
    unpack(are, are+1, p[0]); unpack(aim, aim+1, p[1])
    a(f"v_cvt_pk_bf16_f32 {v(t0)}, {v(t0)}, {v(t0)}\nv_and_b32 {v(dts)}, s35, {v(t0)}")
    a(f"v_lshlrev_b32 {v(vD)}, 16, {v(pD)}\nv_cmp_eq_u32 vcc, 0, {v(lane)}")
    a(f"v_mul_f32 {v(kk)}, s34, {v(dts)}\nv_mul_f32 {v(kk+1)}, 0.15915494, {v(dts)}")
    a(f"v_cndmask_b32 {v(vD)}, 0, {v(vD)}, vcc")
    unpack(A[0][0], A[0][1], p[2]); unpack(A[0][0]+1, A[0][1]+1, p[3])
    a("s_cmp_eq_u32 s6, 0\ns_cbranch_scc0 LsetB")
    st = (list(a.hist))
    a(f"v_mul_f32 {v(are)}, s34, {v(are)}\nv_mul_f32 {v(are+1)}, s34, {v(are+1)}")
    a(f"v_exp_f32 {v(are)}, {v(are)}\nv_exp_f32 {v(are+1)}, {v(are+1)}")
    a(f"v_add_f32 {v(dts)}, {v(dts)}, {v(dts)}")
    a(f"v_cvt_pk_bf16_f32 {v(t0)}, -{v(are)}, -{v(are+1)}")
    unpack(are, are+1, t0)
    a("s_branch LsetJ")
    a.label("LsetB"); a.hist = st
    unpack(A[1][0], A[1][1], p[4]); unpack(A[1][0]+1, A[1][1]+1, p[5])
    cmul2(A[0], A[0], A[1])
    a.label("LsetJ")
    a(f"v_mul_f32 {v(kk8)}, 0x41000000, {v(kk)}\nv_mul_f32 {v(kk8+1)}, 0x41000000, {v(kk+1)}")
    a(f"v_pk_mul_f32 {v(lam8,2)}, {v(are,2)}, {v(kk8,2)} op_sel_hi:[1,0]")
    a(f"v_pk_mul_f32 {v(nu8,2)}, {v(aim,2)}, {v(kk8,2)} op_sel:[0,1]")
    a(f"v_pk_mul_f32 {v(lam,2)}, {v(are,2)}, {v(kk,2)} op_sel_hi:[1,0]")
    a(f"v_pk_mul_f32 {v(nu,2)}, {v(aim,2)}, {v(kk,2)} op_sel:[0,1]")
    for m in range(2): a(f"v_pk_mul_f32 {v(A[0][m],2)}, {v(A[0][m],2)}, {v(dts,2)} op_sel_hi:[1,0]")
    for (w, l_, n_, conj) in ((w8, lam8, nu8, True), (w1, lam, nu, False)):
        for m in range(2):
            a(f"v_fract_f32 {v(n_+m)}, {v(n_+m)}")
        for m in range(2):
            a(f"v_exp_f32 {v(ee+m)}, {v(l_+m)}\nv_cos_f32 {v(w[m])}, {v(n_+m)}\nv_sin_f32 {v(w[m]+1)}, {v(n_+m)}")
        ng = " neg_hi:[1,0]" if conj else ""
        a(f"v_pk_mul_f32 {v(w[0],2)}, {v(w[0],2)}, {v(ee,2)} op_sel_hi:[1,0]{ng}")
        a(f"v_pk_mul_f32 {v(w[1],2)}, {v(w[1],2)}, {v(ee,2)} op_sel:[0,1]{ng}")
    stamp()
    a.raw("    .p2align 3")
    nput = [0]
    def put(x, row):
        d = dd[nput[0] & 1]; nput[0] += 1
        for m in range(2): a(f"v_cvt_pk_bf16_f32 {v(d+m)}, {v(x[m])}, {v(x[m]+1)}")
        a(f"ds_write_b64 {v(aEVW)}, {v(d,2)} offset:{row*EVR}")
    put(w8, 23)
    cur = w8
    for jj in range(2, 33):
        nxt = xb[jj & 1]
        cmul2(nxt, cur, w8); cur = nxt
        if jj < 32: put(cur, 22 + jj)
    w256c = cur
    put(A[0], SROW[0])
    for k in range(1, 9):
        cmul2(A[k], A[k-1], w1); put(A[k], SROW[k])
    for k in (0, 2, 6):
        cmul2(A[k], A[k], w256c, conj=True); put(A[k], SROW[256+k])
    for m_ in range(1, 8):
        if m_ <= 3:
            cmul2(A[4], A[4], w256c, conj=True); put(A[4], SROW[256*m_+4])
        cmul2(A[8], A[8], w256c, conj=True); put(A[8], SROW[256*m_+8])
    stamp()
    T = Regs(base_n)
    KF = [T.alloc(4) for _ in range(17)]
    G4F = {(dl, ph): T.alloc(4) for dl in (2,3,4) for ph in range(2)}
    G8F = {dl: T.alloc(4) for dl in range(4,8)}
    FIX = T.alloc(4)
    BOX = [T.alloc(4) for _ in range(6)]
    conv_n = T.n
    D = T.alloc(16)
    NB = 5
    fa = [T.alloc(4) for _ in range(NB)]; fb = [T.alloc(4) for _ in range(NB)]
    PP = [T.alloc(2) for _ in range(6)]; g4d = T.alloc(); g8d = T.alloc(); spd = T.alloc()
    def rd(ks):
        a(f"ds_read_b128 {v(fa[ks%NB],4)}, {v(aEVA)} offset:{32*ks}")
        a(f"ds_read_b128 {v(fb[ks%NB],4)}, {v(aEVB)} offset:{22*EVR + 32*ks}")
    for ks in range(NB-1): rd(ks)
    for ks in range(16):
        if ks + NB-1 < 16: rd(ks + NB-1)
        a(f"v_mfma_f32_32x32x16_bf16 {v(D,16)}, {v(fa[ks%NB],4)}, {v(fb[ks%NB],4)}, " + (v(D,16) if ks else "0"))
    a.wait(lgkm=0)
    a("s_barrier")
    BOXDEF = [(3,3,-16),(6,5,-16),(11,3,-16),(14,5,-24),(5,7,-16),(12,9,-24)]
    for k, (d0, wd, off) in enumerate(BOXDEF):
        o = BOXT + 512*((wd-3)//2) + 8*(8 - off - d0)
        a(f"ds_read_b64 {v(BOX[k],2)}, {v(aBX)} offset:{o}\nds_read_b64 {v(BOX[k]+2,2)}, {v(aBX)} offset:{o-32}")
    stamp()
    tt = [D+0,D+1,D+2,D+3,D+4,D+5,D+6,D+7,D+12]
    a(f"v_add_f32 {v(tt[0])}, {v(tt[0])}, {v(vD)}")
    for i in range(3, 9):
        pp = PP[i-3]
        a(f"v_cvt_pk_bf16_f32 {v(pp)}, {v(tt[i])}, {v(tt[i-1])}\nv_cvt_pk_bf16_f32 {v(pp+1)}, {v(tt[i-2])}, {v(tt[i-3])}")
        a(f"ds_write_b64 {v(aQW)}, {v(pp,2)} offset:{16 + (i&7)*544 + (i>>3)*8}")
    P1, P2, P7, P8 = PP[0]+1, PP[1]+1, PP[4], PP[5]
    a(f"v_mov_b32_dpp {v(spd)}, {v(P1)} row_newbcast:0 row_mask:0xf bank_mask:0xf")
    a(f"ds_write_b32 {v(aQW)}, {v(P1)} offset:{16 + 544}\nds_write_b32 {v(aQW)}, {v(P2)} offset:{16 + 2*544}")
    a(f"v_mov_b32_dpp {v(spd)}, {v(P8)} row_newbcast:15 row_mask:0x8 bank_mask:0xf")
    a(f"ds_write_b32 {v(aQW)}, {v(P7)} offset:{16 + 544 + 12}\nds_write_b32 {v(aQW)}, {v(P8)} offset:{16 + 2*544 + 12}")
    a(f"ds_write_b16_d16_hi {v(aSP)}, {v(spd)} offset:16")
    a(f"v_cvt_pk_bf16_f32 {v(g4d)}, {v(D+8)}, {v(D+9)}\nv_cvt_pk_bf16_f32 {v(g8d)}, {v(D+10)}, {v(D+11)}")
    a(f"ds_write_b32 {v(aG4W)}, {v(g4d)} offset:{G4O + 120}")
    a(f"ds_write_b16 {v(aG8W)}, {v(g8d)} offset:{G8O + 60}\nds_write_b16_d16_hi {v(aG8W)}, {v(g8d)} offset:{G8O + 60 + 128}")
    a(f"v_readlane_b32 s36, {v(g4d)}, 63")
    a(f"s_mov_b32 s37, 0x00010001")
    a(f"s_lshr_b32 s36, s36, 16")
    for k in range(4):
        a(f"v_bfi_b32 {v(FIX+k)}, {v(BOX[4]+k)}, 0, {v(BOX[0]+k)}")
        a(f"v_lshrrev_b32 {v(FIX+k)}, 7, {v(FIX+k)}\nv_and_b32 {v(FIX+k)}, s37, {v(FIX+k)}\nv_mul_u32_u24 {v(FIX+k)}, s36, {v(FIX+k)}")
    for s_ in range(17):
        a(f"ds_read_b64 {v(KF[s_],2)}, {v(aQR0)} offset:{32*s_}\nds_read_b64 {v(KF[s_]+2,2)}, {v(aQR1)} offset:{32*s_}")
    for (dl, ph), rg in G4F.items():
        for e in range(2):
            a(f"ds_read_b64 {v(rg+2*e,2)}, {v(aG4R)} offset:{G4O + 8*(16*dl - 2*ph - e - 29)}")
    for dl, rg in G8F.items():
        for e in range(2):
            a(f"ds_read2_b32 {v(rg+2*e,2)}, {v(aG8R)} offset0:{16*dl - 2*e - 61} offset1:{16*dl - 2*e - 1 - 61}")
    stamp()
    T = Regs(conv_n)
    ACC = [T.alloc(4) for _ in range(8)]
    WD = [T.alloc(4) for _ in range(6)]
    W4 = [T.alloc(4) for _ in range(2)]; W8 = T.alloc(4)
    NU = 5
    UF = [T.alloc(4) for _ in range(NU)]; F24 = T.alloc(4)
    yd = T.alloc(2)
    started = set()
    def mf(acc, A_, B_, fresh=False):
        c = "0" if (fresh or acc not in started) else v(acc,4)
        started.add(acc)
        a(f"v_mfma_f32_16x16x32_bf16 {v(acc,4)}, {v(A_,4)}, {v(B_,4)}, {c}")
    seq = [(tp, s0) for tp in range(8) for s0 in range(8)]
    def uread(n):
        if n >= 64: return
        tp, s0 = seq[n]
        a(f"ds_read_b128 {v(UF[n%NU],4)}, {v(aU)} offset:{512 + 64*(8*tp - s0) - 32}")
        if s0 == 0 and tp <= 5: a(f"ds_read_b128 {v(F24,4)}, {v(aU)} offset:{512 + 512*tp - 48}")
    for n in range(NU-1): uread(n)
    for tp in range(8):
        cv = []
        if tp <= 5:
            for ph in range(2):
                for e in range(2):
                    i = 2*ph + e
                    cv.append(f"v_cvt_pk_bf16_f32 {v(W4[ph]+2*e)}, {v(WD[0]+i)}, {v(WD[1]+i)}")
                    cv.append(f"v_cvt_pk_bf16_f32 {v(W4[ph]+2*e+1)}, {v(WD[2]+i)}, {v(WD[3]+i)}")
        if tp <= 3:
            for i in range(4): cv.append(f"v_cvt_pk_bf16_f32 {v(W8+i)}, {v(WD[4]+i)}, {v(WD[5]+i)}")
        for s0 in range(8):
            n = 8*tp + s0; F = UF[n % NU]
            if s0 == 0:
                for k, (d0, wd, off) in enumerate(BOXDEF):
                    if (k < 4 and tp <= 5) or (k >= 4 and tp <= 3):
                        mf(WD[k], F if off == -16 else F24, BOX[k], fresh=True)
                if tp <= 3: mf(ACC[tp+4], FIX, F)
                if tp <= 5: mf(ACC[tp+2], KF[16], F)
            mf(ACC[tp], KF[s0], F)
            if s0 >= 2 and cv: a(cv.pop(0))
            if tp <= 6: mf(ACC[tp+1], KF[s0+8], F)
            if s0 >= 2 and cv: a(cv.pop(0))
            uread(n + NU-1)
        assert not cv
        far = []
        if tp <= 5:
            for dl in (2,3,4):
                if tp+dl <= 7:
                    for ph in range(2): far.append((ACC[tp+dl], W4[ph], G4F[(dl,ph)]))
        if tp <= 3:
            for dl in range(4,8):
                if tp+dl <= 7: far.append((ACC[tp+dl], W8, G8F[dl]))
        for x in far: mf(*x)
        a(f"v_cvt_pk_bf16_f32 {v(yd)}, {v(ACC[tp])}, {v(ACC[tp]+1)}\nv_cvt_pk_bf16_f32 {v(yd+1)}, {v(ACC[tp]+2)}, {v(ACC[tp]+3)}")
        a(f"ds_write_b64 {v(aYW)}, {v(yd,2)} offset:{576*tp}")
        a.wait(lgkm=0)
        a("s_barrier")
        stamp()
    stamps_out(base_n)
    a("s_endpgm")
    a.label("Lio")
    a.reset_state(); a.hist, a.smem = list(entry_state[0]), list(entry_state[1])
    stamp_n[0] = 0
    R = Regs(3)
    tid = R.alloc(); ug = [R.alloc() for _ in range(4)]; og = R.alloc(); aYR = R.alloc(); t0 = R.alloc(); t1 = R.alloc(); pf = R.alloc()
    ud = [[R.alloc(2) for e in range(2)] for k in range(4)]
    pd = [R.alloc() for _ in range(4)]; yo = [R.alloc(2) for _ in range(2)]
    a(f"v_and_b32 {v(tid)}, 0xff, v0")
    a(f"s_lshl_b32 s5, s7, 3\nv_lshl_add_u32 {v(ug[0])}, {v(tid)}, 11, s5")
    for k in range(1,4): a(f"v_add_u32 {v(ug[k])}, {hex(k*0x80000)}, {v(ug[0])}")
    if prefetch:
        a(f"s_and_b32 s28, s3, 15\ns_lshl_b32 s28, s28, 17\ns_add_u32 s28, s28, s5")
        a(f"v_lshrrev_b32 {v(t0)}, 1, {v(tid)}\nv_lshl_add_u32 {v(t0)}, {v(t0)}, 10, s28")
    a.wait(lgkm=0)
    if prefetch:
        a(f"global_load_dword {v(pf)}, {v(t0)}, s[8:9]")
    for k in range(4):
        for e in range(2):
            a(f"global_load_dwordx2 {v(ud[k][e],2)}, {v(ug[k])}, s[8:9] offset:{1024*e}")
    stamp()
    a(f"s_lshl_b32 s5, s3, 3\nv_lshl_add_u32 {v(og)}, {v(tid)}, 11, s5")
    a(f"s_sub_u32 s31, s4, 4\ns_lshl_b32 s5, s31, 8\ns_add_u32 s5, s5, {U0+512}\ns_mov_b32 m0, s5")
    a(f"s_mov_b32 s28, 0x05040100\ns_mov_b32 s29, 0x07060302")
    a(f"v_and_b32 {v(t0)}, 3, v2\nv_mul_u32_u24 {v(t0)}, 18, {v(t0)}\nv_lshrrev_b32 {v(t1)}, 4, {v(tid)}\nv_add_u32 {v(t0)}, {v(t0)}, {v(t1)}")
    a(f"v_lshlrev_b32 {v(t0)}, 3, {v(t0)}\nv_add_u32 {v(t0)}, {EV0}, {v(t0)}\nv_bfe_u32 {v(t1)}, v2, 2, 2\ns_movk_i32 s5, {EVS}")
    a(f"v_mad_u32_u24 {v(aYR)}, {v(t1)}, s5, {v(t0)}")
    def stage(k):
        for ch in range(4):
            a(f"v_perm_b32 {v(pd[ch])}, {v(ud[k][1]+(ch>>1))}, {v(ud[k][0]+(ch>>1))}, s{28+(ch&1)}")
            a(f"ds_write_addtid_b32 {v(pd[ch])} offset:{ch*US + k*1024}")
        stamp()
    def bar():
        a.wait(lgkm=0); a("s_barrier")
    def store(t):
        y = yo[t&1]
        a(f"ds_read_b64_tr_b16 {v(y,2)}, {v(aYR)} offset:{576*t}")
        a(f"global_store_dwordx2 {v(og)}, {v(y,2)}, s[26:27]")
        if t < 7: a(f"v_add_u32 {v(og)}, 0x80000, {v(og)}")
        stamp()
    stage(0); bar(); stage(1); bar(); store(0); bar(); store(1); stage(2); bar(); store(2); bar(); store(3); stage(3); bar()
    store(4); bar(); store(5); bar(); store(6); bar(); store(7)
    if stamps:
        a.wait(vm=0); stamp()
    stamps_out(t0)
    a.label("Lend")
    a("s_endpgm")
    hdr = open("concat_heads__ssm_conv_s4d__ssm_conv_s4__prompt.s.ref").read().split("; Override launch")[0]
    out = hdr + f"; @launch grid=(256,1,1) block=(512,1,1) lds={LDS_BYTES}\n"
    out += f'.amdgcn_target "amdgcn-amd-amdhsa--gfx950"\n.text\n.globl {KN}\n.p2align 12\n.type {KN},@function\n{KN}:\n'
    out += a.text()
    out += f""".section .rodata,"a"
.p2align 6
.amdhsa_kernel {KN}
  .amdhsa_next_free_vgpr 256
  .amdhsa_next_free_sgpr 102
  .amdhsa_accum_offset 256
  .amdhsa_group_segment_fixed_size 0
  .amdhsa_kernarg_size 152
  .amdhsa_user_sgpr_count 2
  .amdhsa_user_sgpr_kernarg_segment_ptr 1
  .amdhsa_system_sgpr_workgroup_id_x 1
.end_amdhsa_kernel
"""
    print("nops inserted:", a.nnop, "conv regs", T.hi, file=sys.stderr)
    return out
if __name__ == "__main__":
    open("k1.s","w").write(gen())
    open("k1_st.s","w").write(gen(stamps=True))
    open("k1_nopf.s","w").write(gen(prefetch=False))
```

```python
import sys, struct
from asmfw import *
KN = "concat_heads__ssm_conv_s4d__ssm_conv_s4__prompt_kernel"
def f2u(x): return struct.unpack("<I", struct.pack("<f", x))[0]
LOG2E = 1.4426950408889634
U0, US = 0, 4608
BOXT = 18432
KQ0, KQS = 20480, 5248
G4O, G8O = 4384, 4896
EV0, EVS = 41472, 28736
LDS_BYTES = EV0 + 4*EVS
EVR = 528
ALPHAS = [0,1,2,3,4,5,6,7,8,256,258,260,262,264,516,520,772,776,1032,1288,1544,1800]
MROW = {0:0,1:1,2:2,3:3, 4:256,5:256,6:258,7:260, 8:4,9:5,10:6,11:7, 12:260,13:260,14:262,15:264,
        16:516,17:520,18:1032,19:1544, 20:772,21:776,22:1288,23:1800, 24:8, 28:264}
SROW = {}
for row in sorted(MROW):
    SROW.setdefault(MROW[row], row)
SROW[1288] = 5; SROW[1800] = 12; SROW[8] = 13
assert sorted(SROW.values()) == list(range(22))
def gen(stamps=False, prefetch=True, amp=None):
    a = Asm()
    stamp_n = [0]
    role = ["c"]
    def amp_tail():
        if amp and amp[0] == role[0]:
            if amp[3] is not None: a(f"s_cmp_lg_u32 s2, {amp[3]}\ns_cbranch_scc1 Lamp2{role[0]}")
            a.raw("    s_waitcnt vmcnt(0) lgkmcnt(0)\n    s_memtime s[62:63]\n    s_waitcnt lgkmcnt(0)")
            if amp[1] == "fixed": a.raw(f"    s_mov_b32 s5, {amp[2]}")
            elif amp[1] == "end": a.raw(f"    s_sub_u32 s5, s62, s58\n    s_mul_i32 s5, s5, {amp[2]}")
            else: a.raw(f"    s_sub_u32 s5, s60, s58\n    s_mul_i32 s5, s5, {amp[2]}")
            a.raw(f"Lamp{role[0]}:\n    s_memtime s[64:65]\n    s_waitcnt lgkmcnt(0)\n    s_sub_u32 s64, s64, s62\n    s_cmp_lt_u32 s64, s5\n    s_cbranch_scc1 Lamp{role[0]}\nLamp2{role[0]}:")
    def stamp():
        if amp:
            k = stamp_n[0]; stamp_n[0] += 1
            if amp[0] == role[0] and amp[1] == k:
                a.raw(f"    s_memtime s[60:61]")
                a.raw("    s_waitcnt lgkmcnt(0)"); a.raw("    s_nop 0"); a.lgkm = []; a.smem = []
        if stamps:
            k = stamp_n[0]; stamp_n[0] += 1
            a.raw(f"    s_memtime s[{60+2*k}:{61+2*k}]")
            a.raw("    s_waitcnt lgkmcnt(0)"); a.raw("    s_nop 0"); a.lgkm = []; a.smem = []
    def stamps_out(tmp):
        if stamps:
            a(f"s_load_dwordx2 s[32:33], s[0:1], 144")
            a(f"s_memrealtime s[56:57]")
            a(f"s_lshl_b32 s5, s2, 3\ns_add_u32 s5, s5, s4\ns_lshl_b32 s5, s5, 7\nv_mov_b32 {v(tmp)}, s5")
            a.wait(vm=0, lgkm=0)
            for k in range(stamp_n[0]):
                a(f"s_sub_u32 s5, s{60+2*k}, s58\nv_mov_b32 {v(tmp+1)}, s5\nglobal_store_dword {v(tmp)}, {v(tmp+1)}, s[32:33] offset:{4*k}")
            a(f"v_mov_b32 {v(tmp+1)}, s54\nglobal_store_dword {v(tmp)}, {v(tmp+1)}, s[32:33] offset:120")
            a(f"v_mov_b32 {v(tmp+1)}, s56\nglobal_store_dword {v(tmp)}, {v(tmp+1)}, s[32:33] offset:124")
    if stamps or amp:
        a.raw("    s_memrealtime s[54:55]\n    s_memtime s[58:59]")
    a("s_cmp_ge_u32 s2, 0x100\ns_cbranch_scc1 Lend")
    a("s_bfe_u32 s6, s2, 0x10002")
    a("s_mul_i32 s5, s6, 56")
    a("s_load_dwordx16 s[8:23], s[0:1], s5")
    a("s_load_dwordx4 s[24:27], s[0:1], 120")
    a("s_and_b32 s3, s2, 7\ns_lshl_b32 s3, s3, 5\ns_lshr_b32 s5, s2, 3\ns_or_b32 s3, s3, s5")
    a("v_lshrrev_b32 v1, 6, v0\nv_and_b32 v2, 63, v0\nv_readfirstlane_b32 s4, v1")
    a("s_and_b32 s7, s3, 127")
    a("s_cmp_ge_u32 s4, 4\ns_cbranch_scc1 Lio")
    entry_state = (list(a.hist), list(a.smem))
    R = Regs(3)
    lane = 2
    aEVW, aEVA, aEVB, aQW, aQR0, aQR1, aG4W, aG4R, aG8W, aG8R, aSP, aU, aYW, aBX = [R.alloc() for _ in range(14)]
    vD = R.alloc()
    base_n = R.n
    T = Regs(base_n)
    vPO, vSO = T.alloc(), T.alloc()
    p = [T.alloc() for _ in range(6)]; pdt = T.alloc(); pD = T.alloc()
    a(f"s_lshl_b32 s5, s7, 2\ns_add_u32 s5, s5, s4")
    a(f"s_lshl_b32 s28, s5, 8\nv_lshl_add_u32 {v(vPO)}, {v(lane)}, 2, s28")
    a(f"s_lshl_b32 s28, s5, 1\nv_mov_b32 {v(vSO)}, s28")
    a(f"s_cmp_eq_u32 s6, 0")
    a.wait(lgkm=0)
    a("s_cselect_b64 s[22:23], s[18:19], s[22:23]")
    a("s_cselect_b64 s[24:25], s[20:21], s[24:25]")
    a(f"global_load_ushort {v(pdt)}, {v(vSO)}, s[22:23]")
    for k in range(4):
        a(f"global_load_dword {v(p[k])}, {v(vPO)}, s[{10+2*k}:{11+2*k}]")
    a(f"global_load_ushort {v(pD)}, {v(vSO)}, s[24:25]")
    a("s_cbranch_scc1 LnoB")
    a(f"global_load_dword {v(p[4])}, {v(vPO)}, s[18:19]")
    a(f"global_load_dword {v(p[5])}, {v(vPO)}, s[20:21]")
    a.label("LnoB")
    stamp()
    t0, t1, t2, t3, vr, vq = [T.alloc() for _ in range(6)]
    z4 = T.alloc(4)
    a(f"s_mul_i32 s28, s4, {EVS}\ns_add_u32 s28, s28, {EV0}")
    a(f"s_mul_i32 s29, s4, {KQS}\ns_add_u32 s29, s29, {KQ0}")
    a(f"s_mul_i32 s30, s4, {US}")
    a(f"v_and_b32 {v(vr)}, 15, {v(lane)}\nv_lshrrev_b32 {v(vq)}, 4, {v(lane)}")
    for k in range(4): a(f"v_mov_b32 {v(z4+k)}, 0")
    a(f"v_lshl_add_u32 {v(t0)}, {v(lane)}, 4, s29")
    for k in range(5): a(f"ds_write_b128 {v(t0)}, {v(z4,4)} offset:{1024*k}")
    a(f"v_lshl_add_u32 {v(aG4W)}, {v(lane)}, 2, s29")
    a(f"ds_write_b32 {v(aG4W)}, {v(z4)} offset:{KQS-256}")
    a(f"v_lshl_add_u32 {v(t0)}, {v(lane)}, 3, s30")
    a(f"ds_write_b64 {v(t0)}, {v(z4,2)}")
    a(f"v_lshl_add_u32 {v(aEVW)}, {v(lane)}, 3, s28")
    a(f"v_mov_b32 {v(z4)}, 0x3f80\nv_mov_b32 {v(z4+1)}, 0x3f80")
    a(f"ds_write_b64 {v(aEVW)}, {v(z4,2)} offset:{22*EVR}")
    a(f"s_add_u32 s5, s4, 33\nv_subrev_u32 {v(t0)}, s5, {v(lane)}\nv_cvt_f32_i32 {v(t0)}, {v(t0)}")
    a(f"s_add_u32 s5, s4, 2\nv_cvt_f32_u32 {v(t1)}, s5")
    for i in range(4):
        if i: a(f"v_add_f32 {v(t0)}, -1.0, {v(t0)}")
        a(f"v_sub_f32_e64 {v(z4+i)}, {v(t1)}, abs({v(t0)}) clamp")
    a(f"v_cvt_pk_bf16_f32 {v(z4)}, {v(z4)}, {v(z4+1)}\nv_cvt_pk_bf16_f32 {v(z4+1)}, {v(z4+2)}, {v(z4+3)}")
    a(f"s_lshl_b32 s5, s4, 9\nv_lshl_add_u32 {v(t0)}, {v(lane)}, 3, s5")
    a(f"ds_write_b64 {v(t0)}, {v(z4,2)} offset:{BOXT}")
    a(f"v_and_b32 {v(t0)}, 31, {v(lane)}\nv_lshrrev_b32 {v(t1)}, 5, {v(lane)}\nv_lshl_add_u32 {v(t1)}, {v(t1)}, 4, s28")
    a(f"s_movk_i32 s5, {EVR}")
    a(f"v_mad_u32_u24 {v(aEVB)}, {v(t0)}, s5, {v(t1)}")
    for row in range(32):
        if row in MROW and SROW[MROW[row]] != row:
            a(f"v_writelane_b32 {v(t0)}, {SROW[MROW[row]]}, {row}\nv_writelane_b32 {v(t0)}, {SROW[MROW[row]]}, {row+32}")
    a(f"v_mad_u32_u24 {v(aEVA)}, {v(t0)}, s5, {v(t1)}")
    a(f"v_lshl_add_u32 {v(aQW)}, {v(lane)}, 3, s29")
    a(f"s_movk_i32 s5, 544")
    a(f"v_and_b32 {v(t0)}, 7, {v(lane)}\nv_lshrrev_b32 {v(t1)}, 3, {v(vr)}\nv_sub_u32 {v(t1)}, {v(t1)}, {v(vq)}\nv_add_u32 {v(t1)}, 4, {v(t1)}")
    a(f"v_lshl_add_u32 {v(t1)}, {v(t1)}, 3, s29\nv_mad_u32_u24 {v(aQR0)}, {v(t0)}, s5, {v(t1)}")
    a(f"v_xor_b32 {v(t0)}, 4, {v(t0)}\nv_add_u32 {v(t1)}, 28, {v(vr)}\nv_lshrrev_b32 {v(t1)}, 3, {v(t1)}\nv_sub_u32 {v(t1)}, {v(t1)}, {v(vq)}")
    a(f"v_lshl_add_u32 {v(t1)}, {v(t1)}, 3, s29\nv_mad_u32_u24 {v(aQR1)}, {v(t0)}, s5, {v(t1)}")
    a(f"v_lshrrev_b32 {v(t0)}, 1, {v(vq)}\nv_and_b32 {v(t0)}, {v(t0)}, {v(vq)}")
    a(f"v_lshrrev_b32 {v(t1)}, 2, {v(vr)}\nv_min_u32 {v(t1)}, 2, {v(t1)}\nv_and_b32 {v(t2)}, 3, {v(lane)}")
    a(f"v_mad_u32_u24 {v(t1)}, {v(t1)}, {v(t0)}, {v(t2)}")
    a(f"v_add_u32 {v(t0)}, {v(t0)}, {v(vq)}\nv_lshl_add_u32 {v(t0)}, {v(t0)}, 7, s29\nv_lshl_add_u32 {v(t0)}, {v(t2)}, 1, {v(t0)}")
    a(f"v_mad_u32_u24 {v(aSP)}, {v(t1)}, s5, {v(t0)}")
    a(f"v_lshl_add_u32 {v(aG8W)}, {v(lane)}, 1, s29")
    a(f"v_lshlrev_b32 {v(t0)}, 2, {v(vq)}\nv_sub_u32 {v(t0)}, {v(vr)}, {v(t0)}\nv_add_u32 {v(t0)}, 12, {v(t0)}")
    a(f"v_lshl_add_u32 {v(aG4R)}, {v(t0)}, 3, s29")
    a(f"s_add_u32 s5, s29, {G8O}\nv_lshl_add_u32 {v(aG8R)}, {v(t0)}, 2, s5")
    a(f"v_lshl_add_u32 {v(t0)}, {v(vr)}, 1, {v(vq)}\nv_lshl_add_u32 {v(aU)}, {v(t0)}, 4, s30")
    a(f"v_mul_u32_u24 {v(t0)}, 18, {v(vq)}\nv_add_u32 {v(t0)}, {v(t0)}, {v(vr)}\nv_lshl_add_u32 {v(aYW)}, {v(t0)}, 3, s28")
    a(f"v_lshlrev_b32 {v(t0)}, 3, {v(vq)}\nv_sub_u32 {v(t0)}, {v(vr)}, {v(t0)}\nv_add_u32 {v(t0)}, 24, {v(t0)}\nv_lshlrev_b32 {v(aBX)}, 3, {v(t0)}")
    a(f"s_mov_b32 s34, {hex(f2u(LOG2E))}\ns_mov_b32 s35, 0xffff0000")
    a.wait(vm=0)
    stamp()
    are, aim, lam, nu, lam8, nu8 = [T.alloc(2) for _ in range(6)]
    kk = T.alloc(2); kk8 = T.alloc(2); dts = T.alloc(2)
    A = [[T.alloc(2) for m in range(2)] for k in range(9)]
    w1 = [T.alloc(2) for m in range(2)]; w8 = [T.alloc(2) for m in range(2)]
    xb = [[T.alloc(2) for m in range(2)] for k in range(2)]
    tm = [T.alloc(2) for m in range(2)]; ee = T.alloc(2)
    dd = [T.alloc(2) for k in range(2)]
    def unpack(dlo, dhi, src):
        a(f"v_lshlrev_b32 {v(dlo)}, 16, {v(src)}\nv_and_b32 {v(dhi)}, s35, {v(src)}")
    def cmul2(dst, x, w, conj=False):
        for m in range(2): a(f"v_pk_mul_f32 {v(tm[m],2)}, {v(x[m],2)}, {v(w[m],2)} op_sel_hi:[1,0]")
        ng = "neg_hi:[1,0,0]" if conj else "neg_lo:[1,0,0]"
        for m in range(2): a(f"v_pk_fma_f32 {v(dst[m],2)}, {v(x[m],2)}, {v(w[m],2)}, {v(tm[m],2)} op_sel:[1,1,0] op_sel_hi:[0,1,1] {ng}")
    a(f"v_lshlrev_b32 {v(t0)}, 16, {v(pdt)}\nv_mul_f32 {v(t0)}, s34, {v(t0)}\nv_exp_f32 {v(t0)}, {v(t0)}")
    unpack(are, are+1, p[0]); unpack(aim, aim+1, p[1])
    a(f"v_cvt_pk_bf16_f32 {v(t0)}, {v(t0)}, {v(t0)}\nv_and_b32 {v(dts)}, s35, {v(t0)}")
    a(f"v_lshlrev_b32 {v(vD)}, 16, {v(pD)}\nv_cmp_eq_u32 vcc, 0, {v(lane)}")
    a(f"v_mul_f32 {v(kk)}, s34, {v(dts)}\nv_mul_f32 {v(kk+1)}, 0.15915494, {v(dts)}")
    a(f"v_cndmask_b32 {v(vD)}, 0, {v(vD)}, vcc")
    unpack(A[0][0], A[0][1], p[2]); unpack(A[0][0]+1, A[0][1]+1, p[3])
    a("s_cmp_eq_u32 s6, 0\ns_cbranch_scc0 LsetB")
    st = (list(a.hist))
    a(f"v_mul_f32 {v(are)}, s34, {v(are)}\nv_mul_f32 {v(are+1)}, s34, {v(are+1)}")
    a(f"v_exp_f32 {v(are)}, {v(are)}\nv_exp_f32 {v(are+1)}, {v(are+1)}")
    a(f"v_add_f32 {v(dts)}, {v(dts)}, {v(dts)}")
    a(f"v_cvt_pk_bf16_f32 {v(t0)}, -{v(are)}, -{v(are+1)}")
    unpack(are, are+1, t0)
    a("s_branch LsetJ")
    a.label("LsetB"); a.hist = st
    unpack(A[1][0], A[1][1], p[4]); unpack(A[1][0]+1, A[1][1]+1, p[5])
    cmul2(A[0], A[0], A[1])
    a.label("LsetJ")
    a(f"v_mul_f32 {v(kk8)}, 0x41000000, {v(kk)}\nv_mul_f32 {v(kk8+1)}, 0x41000000, {v(kk+1)}")
    a(f"v_pk_mul_f32 {v(lam8,2)}, {v(are,2)}, {v(kk8,2)} op_sel_hi:[1,0]")
    a(f"v_pk_mul_f32 {v(nu8,2)}, {v(aim,2)}, {v(kk8,2)} op_sel:[0,1]")
    a(f"v_pk_mul_f32 {v(lam,2)}, {v(are,2)}, {v(kk,2)} op_sel_hi:[1,0]")
    a(f"v_pk_mul_f32 {v(nu,2)}, {v(aim,2)}, {v(kk,2)} op_sel:[0,1]")
    for m in range(2): a(f"v_pk_mul_f32 {v(A[0][m],2)}, {v(A[0][m],2)}, {v(dts,2)} op_sel_hi:[1,0]")
    for (w, l_, n_, conj) in ((w8, lam8, nu8, True), (w1, lam, nu, False)):
        for m in range(2):
            a(f"v_fract_f32 {v(n_+m)}, {v(n_+m)}")
        for m in range(2):
            a(f"v_exp_f32 {v(ee+m)}, {v(l_+m)}\nv_cos_f32 {v(w[m])}, {v(n_+m)}\nv_sin_f32 {v(w[m]+1)}, {v(n_+m)}")
        ng = " neg_hi:[1,0]" if conj else ""
        a(f"v_pk_mul_f32 {v(w[0],2)}, {v(w[0],2)}, {v(ee,2)} op_sel_hi:[1,0]{ng}")
        a(f"v_pk_mul_f32 {v(w[1],2)}, {v(w[1],2)}, {v(ee,2)} op_sel:[0,1]{ng}")
    stamp()
    a.raw("    .p2align 3")
    nput = [0]
    def put(x, row):
        d = dd[nput[0] & 1]; nput[0] += 1
        for m in range(2): a(f"v_cvt_pk_bf16_f32 {v(d+m)}, {v(x[m])}, {v(x[m]+1)}")
        a(f"ds_write_b64 {v(aEVW)}, {v(d,2)} offset:{row*EVR}")
    put(w8, 23)
    cur = w8
    for jj in range(2, 33):
        nxt = xb[jj & 1]
        cmul2(nxt, cur, w8); cur = nxt
        if jj < 32: put(cur, 22 + jj)
    w256c = cur
    put(A[0], SROW[0])
    for k in range(1, 9):
        cmul2(A[k], A[k-1], w1); put(A[k], SROW[k])
    for k in (0, 2, 6):
        cmul2(A[k], A[k], w256c, conj=True); put(A[k], SROW[256+k])
    for m_ in range(1, 8):
        if m_ <= 3:
            cmul2(A[4], A[4], w256c, conj=True); put(A[4], SROW[256*m_+4])
        cmul2(A[8], A[8], w256c, conj=True); put(A[8], SROW[256*m_+8])
    stamp()
    T = Regs(base_n)
    KF = [T.alloc(4) for _ in range(17)]
    G4F = {(dl, ph): T.alloc(4) for dl in (2,3,4) for ph in range(2)}
    G8F = {dl: T.alloc(4) for dl in range(4,8)}
    FIX = T.alloc(4)
    BOX = [T.alloc(4) for _ in range(6)]
    conv_n = T.n
    D = T.alloc(16)
    NB = 5
    fa = [T.alloc(4) for _ in range(NB)]; fb = [T.alloc(4) for _ in range(NB)]
    PP = [T.alloc(2) for _ in range(6)]; g4d = T.alloc(); g8d = T.alloc(); spd = T.alloc()
    def rd(ks):
        a(f"ds_read_b128 {v(fa[ks%NB],4)}, {v(aEVA)} offset:{32*ks}")
        a(f"ds_read_b128 {v(fb[ks%NB],4)}, {v(aEVB)} offset:{22*EVR + 32*ks}")
    for ks in range(NB-1): rd(ks)
    for ks in range(16):
        if ks + NB-1 < 16: rd(ks + NB-1)
        a(f"v_mfma_f32_32x32x16_bf16 {v(D,16)}, {v(fa[ks%NB],4)}, {v(fb[ks%NB],4)}, " + (v(D,16) if ks else "0"))
    a.wait(lgkm=0)
    a("s_barrier")
    BOXDEF = [(3,3,-16),(6,5,-16),(11,3,-16),(14,5,-24),(5,7,-16),(12,9,-24)]
    for k, (d0, wd, off) in enumerate(BOXDEF):
        o = BOXT + 512*((wd-3)//2) + 8*(8 - off - d0)
        a(f"ds_read_b64 {v(BOX[k],2)}, {v(aBX)} offset:{o}\nds_read_b64 {v(BOX[k]+2,2)}, {v(aBX)} offset:{o-32}")
    stamp()
    tt = [D+0,D+1,D+2,D+3,D+4,D+5,D+6,D+7,D+12]
    a(f"v_add_f32 {v(tt[0])}, {v(tt[0])}, {v(vD)}")
    for i in range(3, 9):
        pp = PP[i-3]
        a(f"v_cvt_pk_bf16_f32 {v(pp)}, {v(tt[i])}, {v(tt[i-1])}\nv_cvt_pk_bf16_f32 {v(pp+1)}, {v(tt[i-2])}, {v(tt[i-3])}")
        a(f"ds_write_b64 {v(aQW)}, {v(pp,2)} offset:{16 + (i&7)*544 + (i>>3)*8}")
    P1, P2, P7, P8 = PP[0]+1, PP[1]+1, PP[4], PP[5]
    a(f"v_mov_b32_dpp {v(spd)}, {v(P1)} row_newbcast:0 row_mask:0xf bank_mask:0xf")
    a(f"ds_write_b32 {v(aQW)}, {v(P1)} offset:{16 + 544}\nds_write_b32 {v(aQW)}, {v(P2)} offset:{16 + 2*544}")
    a(f"v_mov_b32_dpp {v(spd)}, {v(P8)} row_newbcast:15 row_mask:0x8 bank_mask:0xf")
    a(f"ds_write_b32 {v(aQW)}, {v(P7)} offset:{16 + 544 + 12}\nds_write_b32 {v(aQW)}, {v(P8)} offset:{16 + 2*544 + 12}")
    a(f"ds_write_b16_d16_hi {v(aSP)}, {v(spd)} offset:16")
    a(f"v_cvt_pk_bf16_f32 {v(g4d)}, {v(D+8)}, {v(D+9)}\nv_cvt_pk_bf16_f32 {v(g8d)}, {v(D+10)}, {v(D+11)}")
    a(f"ds_write_b32 {v(aG4W)}, {v(g4d)} offset:{G4O + 120}")
    a(f"ds_write_b16 {v(aG8W)}, {v(g8d)} offset:{G8O + 60}\nds_write_b16_d16_hi {v(aG8W)}, {v(g8d)} offset:{G8O + 60 + 128}")
    a(f"v_readlane_b32 s36, {v(g4d)}, 63")
    a(f"s_mov_b32 s37, 0x00010001")
    a(f"s_lshr_b32 s36, s36, 16")
    for k in range(4):
        a(f"v_bfi_b32 {v(FIX+k)}, {v(BOX[4]+k)}, 0, {v(BOX[0]+k)}")
        a(f"v_lshrrev_b32 {v(FIX+k)}, 7, {v(FIX+k)}\nv_and_b32 {v(FIX+k)}, s37, {v(FIX+k)}\nv_mul_u32_u24 {v(FIX+k)}, s36, {v(FIX+k)}")
    for s_ in range(17):
        a(f"ds_read_b64 {v(KF[s_],2)}, {v(aQR0)} offset:{32*s_}\nds_read_b64 {v(KF[s_]+2,2)}, {v(aQR1)} offset:{32*s_}")
    for (dl, ph), rg in G4F.items():
        for e in range(2):
            a(f"ds_read_b64 {v(rg+2*e,2)}, {v(aG4R)} offset:{G4O + 8*(16*dl - 2*ph - e - 29)}")
    for dl, rg in G8F.items():
        for e in range(2):
            a(f"ds_read2_b32 {v(rg+2*e,2)}, {v(aG8R)} offset0:{16*dl - 2*e - 61} offset1:{16*dl - 2*e - 1 - 61}")
    stamp()
    T = Regs(conv_n)
    ACC = [T.alloc(4) for _ in range(8)]
    WD = [T.alloc(4) for _ in range(6)]
    W4 = [T.alloc(4) for _ in range(2)]; W8 = T.alloc(4)
    NU = 5
    UF = [T.alloc(4) for _ in range(NU)]; F24 = T.alloc(4)
    yd = T.alloc(2)
    started = set()
    def mf(acc, A_, B_, fresh=False):
        c = "0" if (fresh or acc not in started) else v(acc,4)
        started.add(acc)
        a(f"v_mfma_f32_16x16x32_bf16 {v(acc,4)}, {v(A_,4)}, {v(B_,4)}, {c}")
    seq = [(tp, s0) for tp in range(8) for s0 in range(8)]
    def uread(n):
        if n >= 64: return
        tp, s0 = seq[n]
        a(f"ds_read_b128 {v(UF[n%NU],4)}, {v(aU)} offset:{512 + 64*(8*tp - s0) - 32}")
        if s0 == 0 and tp <= 5: a(f"ds_read_b128 {v(F24,4)}, {v(aU)} offset:{512 + 512*tp - 48}")
    for n in range(NU-1): uread(n)
    for tp in range(8):
        cv = []
        if tp <= 5:
            for ph in range(2):
                for e in range(2):
                    i = 2*ph + e
                    cv.append(f"v_cvt_pk_bf16_f32 {v(W4[ph]+2*e)}, {v(WD[0]+i)}, {v(WD[1]+i)}")
                    cv.append(f"v_cvt_pk_bf16_f32 {v(W4[ph]+2*e+1)}, {v(WD[2]+i)}, {v(WD[3]+i)}")
        if tp <= 3:
            for i in range(4): cv.append(f"v_cvt_pk_bf16_f32 {v(W8+i)}, {v(WD[4]+i)}, {v(WD[5]+i)}")
        for s0 in range(8):
            n = 8*tp + s0; F = UF[n % NU]
            if s0 == 0:
                for k, (d0, wd, off) in enumerate(BOXDEF):
                    if (k < 4 and tp <= 5) or (k >= 4 and tp <= 3):
                        mf(WD[k], F if off == -16 else F24, BOX[k], fresh=True)
                if tp <= 3: mf(ACC[tp+4], FIX, F)
                if tp <= 5: mf(ACC[tp+2], KF[16], F)
            mf(ACC[tp], KF[s0], F)
            if s0 >= 2 and cv: a(cv.pop(0))
            if tp <= 6: mf(ACC[tp+1], KF[s0+8], F)
            if s0 >= 2 and cv: a(cv.pop(0))
            uread(n + NU-1)
        assert not cv
        far = []
        if tp <= 5:
            for dl in (2,3,4):
                if tp+dl <= 7:
                    for ph in range(2): far.append((ACC[tp+dl], W4[ph], G4F[(dl,ph)]))
        if tp <= 3:
            for dl in range(4,8):
                if tp+dl <= 7: far.append((ACC[tp+dl], W8, G8F[dl]))
        for x in far: mf(*x)
        a(f"v_cvt_pk_bf16_f32 {v(yd)}, {v(ACC[tp])}, {v(ACC[tp]+1)}\nv_cvt_pk_bf16_f32 {v(yd+1)}, {v(ACC[tp]+2)}, {v(ACC[tp]+3)}")
        a(f"ds_write_b64 {v(aYW)}, {v(yd,2)} offset:{576*tp}")
        a.wait(lgkm=0)
        a("s_barrier")
        stamp()
    stamps_out(base_n)
    amp_tail()
    a("s_endpgm")
    a.label("Lio")
    a.reset_state(); a.hist, a.smem = list(entry_state[0]), list(entry_state[1])
    stamp_n[0] = 0; role[0] = "i"
    R = Regs(3)
    tid = R.alloc(); ug = [R.alloc() for _ in range(4)]; og = R.alloc(); aYR = R.alloc(); t0 = R.alloc(); t1 = R.alloc(); pf = R.alloc()
    ud = [[R.alloc(2) for e in range(2)] for k in range(4)]
    pd = [R.alloc() for _ in range(4)]; yo = [R.alloc(2) for _ in range(2)]
    a(f"v_and_b32 {v(tid)}, 0xff, v0")
    a(f"s_lshl_b32 s5, s7, 3\nv_lshl_add_u32 {v(ug[0])}, {v(tid)}, 11, s5")
    for k in range(1,4): a(f"v_add_u32 {v(ug[k])}, {hex(k*0x80000)}, {v(ug[0])}")
    if prefetch:
        a(f"s_and_b32 s28, s3, 15\ns_lshl_b32 s28, s28, 17\ns_add_u32 s28, s28, s5")
        a(f"v_lshrrev_b32 {v(t0)}, 1, {v(tid)}\nv_lshl_add_u32 {v(t0)}, {v(t0)}, 10, s28")
    a.wait(lgkm=0)
    if prefetch:
        a(f"global_load_dword {v(pf)}, {v(t0)}, s[8:9]")
    for k in range(4):
        for e in range(2):
            a(f"global_load_dwordx2 {v(ud[k][e],2)}, {v(ug[k])}, s[8:9] offset:{1024*e}")
    stamp()
    a(f"s_lshl_b32 s5, s3, 3\nv_lshl_add_u32 {v(og)}, {v(tid)}, 11, s5")
    a(f"s_sub_u32 s31, s4, 4\ns_lshl_b32 s5, s31, 8\ns_add_u32 s5, s5, {U0+512}\ns_mov_b32 m0, s5")
    a(f"s_mov_b32 s28, 0x05040100\ns_mov_b32 s29, 0x07060302")
    a(f"v_and_b32 {v(t0)}, 3, v2\nv_mul_u32_u24 {v(t0)}, 18, {v(t0)}\nv_lshrrev_b32 {v(t1)}, 4, {v(tid)}\nv_add_u32 {v(t0)}, {v(t0)}, {v(t1)}")
    a(f"v_lshlrev_b32 {v(t0)}, 3, {v(t0)}\nv_add_u32 {v(t0)}, {EV0}, {v(t0)}\nv_bfe_u32 {v(t1)}, v2, 2, 2\ns_movk_i32 s5, {EVS}")
    a(f"v_mad_u32_u24 {v(aYR)}, {v(t1)}, s5, {v(t0)}")
    def stage(k):
        for ch in range(4):
            a(f"v_perm_b32 {v(pd[ch])}, {v(ud[k][1]+(ch>>1))}, {v(ud[k][0]+(ch>>1))}, s{28+(ch&1)}")
            a(f"ds_write_addtid_b32 {v(pd[ch])} offset:{ch*US + k*1024}")
        stamp()
    def bar():
        a.wait(lgkm=0); a("s_barrier")
    def store(t):
        y = yo[t&1]
        a(f"ds_read_b64_tr_b16 {v(y,2)}, {v(aYR)} offset:{576*t}")
        a(f"global_store_dwordx2 {v(og)}, {v(y,2)}, s[26:27]")
        if t < 7: a(f"v_add_u32 {v(og)}, 0x80000, {v(og)}")
        stamp()
    stage(0); bar(); stage(1); bar(); store(0); bar(); store(1); stage(2); bar(); store(2); bar(); store(3); stage(3); bar()
    store(4); bar(); store(5); bar(); store(6); bar(); store(7)
    if stamps:
        a.wait(vm=0); stamp()
    stamps_out(t0)
    amp_tail()
    a.label("Lend")
    a("s_endpgm")
    hdr = open("concat_heads__ssm_conv_s4d__ssm_conv_s4__prompt.s.ref").read().split("; Override launch")[0]
    out = hdr + f"; @launch grid=(256,1,1) block=(512,1,1) lds={LDS_BYTES}\n"
    out += f'.amdgcn_target "amdgcn-amd-amdhsa--gfx950"\n.text\n.globl {KN}\n.p2align 12\n.type {KN},@function\n{KN}:\n'
    out += a.text()
    out += f""".section .rodata,"a"
.p2align 6
.amdhsa_kernel {KN}
  .amdhsa_next_free_vgpr 256
  .amdhsa_next_free_sgpr 102
  .amdhsa_accum_offset 256
  .amdhsa_group_segment_fixed_size 0
  .amdhsa_kernarg_size 152
  .amdhsa_user_sgpr_count 2
  .amdhsa_user_sgpr_kernarg_segment_ptr 1
  .amdhsa_system_sgpr_workgroup_id_x 1
.end_amdhsa_kernel
"""
    print("nops inserted:", a.nnop, "conv regs", T.hi, file=sys.stderr)
    return out
if __name__ == "__main__":
    open("k1.s","w").write(gen())
    open("k1_st.s","w").write(gen(stamps=True))
    open("k1_nopf.s","w").write(gen(prefetch=False))
    open("a1.s","w").write(gen(amp=("i","fixed",48000,None)))
    open("a2.s","w").write(gen(amp=("i","end",10,None)))
    open("a3.s","w").write(gen(amp=("c",0,10,None)))
    open("a4.s","w").write(gen(amp=("c",1,10,None)))
    open("a5.s","w").write(gen(amp=("c",3,10,None)))
    open("a6.s","w").write(gen(amp=("i","end",10,100)))
```

```python
import sys, struct
from asmfw import *
KN = "concat_heads__ssm_conv_s4d__ssm_conv_s4__prompt_kernel"
def f2u(x): return struct.unpack("<I", struct.pack("<f", x))[0]
LOG2E = 1.4426950408889634
U0, US = 0, 4608
BOXT = 36864
EV0, EVS, EVR = 38912, 14912, 272
QO = 22*EVR + 32
G4O, G8O, YO = QO + 4384, QO + 4896, QO + 5376
LDS_BYTES = EV0 + 8*EVS
MROW = {0:0,1:1,2:2,3:3, 4:256,5:256,6:258,7:260, 8:4,9:5,10:6,11:7, 12:260,13:260,14:262,15:264,
        16:516,17:520,18:1032,19:1544, 20:772,21:776,22:1288,23:1800, 24:8, 28:264}
def pick_srow():
    import itertools
    base = {}
    for row in sorted(MROW): base.setdefault(MROW[row], row)
    groups = [[0,1,2,3,12,13,14,15,20,21,22,23,24,25,26,27], [4,5,6,7,8,9,10,11,16,17,18,19,28,29,30,31]]
    best = None
    for perm in itertools.permutations([5,12,13]):
        sr = dict(base); sr[1288], sr[1800], sr[8] = perm
        m = {row: (sr[MROW[row]] if row in MROW else row) for row in range(32)}
        c = 0
        for g in groups:
            banks = {}
            for row in g: banks.setdefault(m[row] % 16, set()).add(m[row])
            c += max(len(x) for x in banks.values()) - 1
        if best is None or c < best[0]: best = (c, sr, m)
    return best
NCONF, SROW, AMAP = pick_srow()
BOXDEF = [(3,3,-16),(6,5,-16),(11,3,-16),(14,5,-24),(5,7,-16),(12,9,-24)]
def gen(stamps=False, amp=None, prefetch=False, warm=True, NU=6):
    a = Asm()
    stamp_n = [0]
    def amp_tail(tag):
        if amp:
            if amp[2] is not None: a(f"s_cmp_lg_u32 s2, {amp[2]}\ns_cbranch_scc1 Lamp2{tag}")
            a.raw("    s_waitcnt vmcnt(0) lgkmcnt(0)\n    s_memtime s[62:63]\n    s_waitcnt lgkmcnt(0)")
            if amp[0] == "end": a.raw(f"    s_sub_u32 s5, s62, s58\n    s_mul_i32 s5, s5, {amp[1]}")
            else: a.raw(f"    s_sub_u32 s5, s60, s58\n    s_mul_i32 s5, s5, {amp[1]}")
            a.raw(f"Lamp{tag}:\n    s_memtime s[64:65]\n    s_waitcnt lgkmcnt(0)\n    s_sub_u32 s64, s64, s62\n    s_cmp_lt_u32 s64, s5\n    s_cbranch_scc1 Lamp{tag}\nLamp2{tag}:")
    def stamp():
        k = stamp_n[0]; stamp_n[0] += 1
        if stamps or (amp and amp[0] == k):
            kk_ = k if stamps else 0
            a.raw(f"    s_memtime s[{60+2*kk_}:{61+2*kk_}]")
            a.raw("    s_waitcnt lgkmcnt(0)"); a.raw("    s_nop 0"); a.lgkm = []; a.smem = []
    def stamps_out(tmp):
        if stamps:
            a.wait(vm=0); stamp()
            a(f"s_load_dwordx2 s[32:33], s[0:1], 144")
            a(f"s_memrealtime s[56:57]")
            a(f"s_lshl_b32 s5, s2, 3\ns_add_u32 s5, s5, s4\ns_lshl_b32 s5, s5, 7\nv_mov_b32 {v(tmp)}, s5")
            a.wait(vm=0, lgkm=0)
            for k in range(stamp_n[0]):
                a(f"s_sub_u32 s5, s{60+2*k}, s58\nv_mov_b32 {v(tmp+1)}, s5\nglobal_store_dword {v(tmp)}, {v(tmp+1)}, s[32:33] offset:{4*k}")
            a(f"v_mov_b32 {v(tmp+1)}, s54\nglobal_store_dword {v(tmp)}, {v(tmp+1)}, s[32:33] offset:120")
            a(f"v_mov_b32 {v(tmp+1)}, s56\nglobal_store_dword {v(tmp)}, {v(tmp+1)}, s[32:33] offset:124")
    if stamps or amp:
        a.raw("    s_memrealtime s[54:55]\n    s_memtime s[58:59]")
    a("s_cmp_ge_u32 s2, 0x100\ns_cbranch_scc1 Lend")
    a("s_bfe_u32 s6, s2, 0x10002")
    a("s_mul_i32 s5, s6, 56")
    a("s_load_dwordx16 s[8:23], s[0:1], s5")
    a("s_load_dwordx4 s[24:27], s[0:1], 120")
    lane = 2
    R = Regs(3)
    aEVA, aEVB, aQW, aQR0, aQR1, aG4R, aG8W, aG8R, aSP, aU, aYW, aYR, aZ, og, vD = [R.alloc() for _ in range(15)]
    BOX = [R.alloc(4) for _ in range(6)]; FIX = R.alloc(4)
    base_n = R.n
    T = Regs(base_n)
    vPO, vSO, ug0, ug1 = [T.alloc() for _ in range(4)]
    p = [T.alloc() for _ in range(6)]; pdt = T.alloc(); pD = T.alloc()
    t0, t1, t2, vr, vq, junk = [T.alloc() for _ in range(6)]
    z4 = T.alloc(4)
    ud = [[T.alloc(4) for e in range(2)] for k in range(2)]
    if warm:
        a(f"s_getpc_b64 s[38:39]\nv_lshlrev_b32 {v(t0)}, 7, v0\nv_min_u32 {v(t0)}, CODE_BYTES, {v(t0)}")
    a("v_lshrrev_b32 v1, 6, v0\nv_and_b32 v2, 63, v0\nv_readfirstlane_b32 s4, v1")
    a("s_and_b32 s3, s2, 7\ns_lshl_b32 s3, s3, 4\ns_bfe_u32 s5, s2, 0x40003\ns_or_b32 s3, s3, s5")
    a("s_and_b32 s7, s3, 63")
    if warm:
        a("s_cmp_ge_u32 s4, 2\ns_cbranch_scc1 Lnowarm")
        a(f"global_load_dword {v(junk)}, {v(t0)}, s[38:39]")
        a.label("Lnowarm")
    a(f"s_lshl_b32 s5, s7, 3\ns_add_u32 s5, s5, s4")
    a(f"s_lshl_b32 s28, s5, 8\nv_lshl_add_u32 {v(vPO)}, {v(lane)}, 2, s28")
    a(f"s_lshl_b32 s28, s5, 1\nv_mov_b32 {v(vSO)}, s28")
    a(f"s_lshl_b32 s5, s7, 4\nv_lshl_add_u32 {v(ug0)}, v0, 11, s5\nv_add_u32 {v(ug1)}, 0x100000, {v(ug0)}")
    a(f"v_and_b32 {v(t0)}, 0xff, v0\ns_lshl_b32 s5, s3, 4\nv_lshl_add_u32 {v(og)}, {v(t0)}, 11, s5")
    a(f"s_and_b32 s31, s4, 3")
    a(f"s_add_u32 s5, s31, 33\nv_subrev_u32 {v(t0)}, s5, {v(lane)}\nv_cvt_f32_i32 {v(t0)}, {v(t0)}")
    a(f"s_add_u32 s5, s31, 2\nv_cvt_f32_u32 {v(t1)}, s5")
    for i in range(4):
        if i: a(f"v_add_f32 {v(t0)}, -1.0, {v(t0)}")
        a(f"v_sub_f32_e64 {v(z4+i)}, {v(t1)}, abs({v(t0)}) clamp")
    a(f"v_cvt_pk_bf16_f32 {v(z4)}, {v(z4)}, {v(z4+1)}\nv_cvt_pk_bf16_f32 {v(z4+1)}, {v(z4+2)}, {v(z4+3)}")
    a(f"s_lshl_b32 s5, s31, 9\nv_lshl_add_u32 {v(t0)}, {v(lane)}, 3, s5")
    a(f"ds_write_b64 {v(t0)}, {v(z4,2)} offset:{BOXT}")
    a(f"s_cmp_eq_u32 s6, 0")
    a.wait(lgkm=0)
    a("s_cselect_b64 s[22:23], s[18:19], s[22:23]")
    a("s_cselect_b64 s[24:25], s[20:21], s[24:25]")
    a("s_cbranch_scc1 LnoB")
    a(f"global_load_dword {v(p[4])}, {v(vPO)}, s[18:19]")
    a(f"global_load_dword {v(p[5])}, {v(vPO)}, s[20:21]")
    a.label("LnoB")
    a(f"global_load_ushort {v(pdt)}, {v(vSO)}, s[22:23]")
    for k in range(4):
        a(f"global_load_dword {v(p[k])}, {v(vPO)}, s[{10+2*k}:{11+2*k}]")
    a(f"global_load_ushort {v(pD)}, {v(vSO)}, s[24:25]")
    a("s_barrier")
    for e in range(2):
        a(f"global_load_dwordx4 {v(ud[0][e],4)}, {v(ug0)}, s[8:9] offset:{1024*e}")
    stamp()
    if warm:
        a("s_mov_b64 exec, 0")
        a("s_cmp_eq_u32 s4, 1\ns_cbranch_scc1 Lpad1\ns_cmp_eq_u32 s4, 2\ns_cbranch_scc1 Lpad2")
        a("s_lshr_b32 s5, s2, 7\ns_lshl_b32 s5, s5, 3\ns_add_u32 s5, s5, s4")
        a("s_cmp_eq_u32 s5, 3\ns_cbranch_scc1 LconvB\ns_cmp_eq_u32 s5, 11\ns_cbranch_scc1 LconvA")
        a.label("Lback")
        a("s_mov_b64 exec, -1")
    a(f"s_mul_i32 s28, s4, {EVS}\ns_add_u32 s28, s28, {EV0}")
    a(f"s_add_u32 s29, s28, {QO}")
    a(f"s_mul_i32 s30, s4, {US}")
    a(f"v_and_b32 {v(vr)}, 15, {v(lane)}\nv_lshrrev_b32 {v(vq)}, 4, {v(lane)}")
    a(f"v_lshlrev_b32 {v(t0)}, 3, {v(vq)}\nv_sub_u32 {v(t0)}, {v(vr)}, {v(t0)}\nv_add_u32 {v(t0)}, 24, {v(t0)}\nv_lshlrev_b32 {v(t0)}, 3, {v(t0)}")
    for k, (d0, wd, off) in enumerate(BOXDEF):
        o = BOXT + 512*((wd-3)//2) + 8*(8 - off - d0)
        a(f"ds_read_b64 {v(BOX[k],2)}, {v(t0)} offset:{o}\nds_read_b64 {v(BOX[k]+2,2)}, {v(t0)} offset:{o-32}")
    for k in range(4): a(f"v_mov_b32 {v(z4+k)}, 0")
    a(f"v_lshl_add_u32 {v(t0)}, {v(lane)}, 3, s30\nv_mov_b32 {v(t1)}, 0x3f80\ns_mov_b32 m0, s28")
    a(f"ds_write_b64 {v(t0)}, {v(z4,2)}")
    a(f"ds_write_addtid_b32 {v(t1)} offset:{22*EVR}")
    a(f"v_and_b32 {v(t0)}, 31, {v(lane)}\nv_lshrrev_b32 {v(t1)}, 5, {v(lane)}\nv_lshl_add_u32 {v(t1)}, {v(t1)}, 4, s28")
    a(f"s_movk_i32 s5, {EVR}")
    a(f"v_mad_u32_u24 {v(aEVB)}, {v(t0)}, s5, {v(t1)}")
    for row in range(32):
        if AMAP[row] != row:
            a(f"v_writelane_b32 {v(t0)}, {AMAP[row]}, {row}\nv_writelane_b32 {v(t0)}, {AMAP[row]}, {row+32}")
    a(f"v_mad_u32_u24 {v(aEVA)}, {v(t0)}, s5, {v(t1)}")
    a(f"v_lshl_add_u32 {v(aQW)}, {v(lane)}, 3, s29")
    a(f"s_movk_i32 s5, 544")
    a(f"v_and_b32 {v(t0)}, 7, {v(lane)}\nv_lshrrev_b32 {v(t1)}, 3, {v(lane)}\nv_lshl_add_u32 {v(t2)}, {v(t0)}, 3, s28\nv_mad_u32_u24 {v(aZ)}, {v(t1)}, s5, {v(t2)}")
    a(f"v_lshrrev_b32 {v(t1)}, 3, {v(vr)}\nv_sub_u32 {v(t1)}, {v(t1)}, {v(vq)}\nv_add_u32 {v(t1)}, 4, {v(t1)}")
    a(f"v_lshl_add_u32 {v(t1)}, {v(t1)}, 3, s29\nv_mad_u32_u24 {v(aQR0)}, {v(t0)}, s5, {v(t1)}")
    a(f"v_xor_b32 {v(t0)}, 4, {v(t0)}\nv_add_u32 {v(t1)}, 28, {v(vr)}\nv_lshrrev_b32 {v(t1)}, 3, {v(t1)}\nv_sub_u32 {v(t1)}, {v(t1)}, {v(vq)}")
    a(f"v_lshl_add_u32 {v(t1)}, {v(t1)}, 3, s29\nv_mad_u32_u24 {v(aQR1)}, {v(t0)}, s5, {v(t1)}")
    a(f"v_lshrrev_b32 {v(t0)}, 1, {v(vq)}\nv_and_b32 {v(t0)}, {v(t0)}, {v(vq)}")
    a(f"v_lshrrev_b32 {v(t1)}, 2, {v(vr)}\nv_min_u32 {v(t1)}, 2, {v(t1)}\nv_and_b32 {v(t2)}, 3, {v(lane)}")
    a(f"v_mad_u32_u24 {v(t1)}, {v(t1)}, {v(t0)}, {v(t2)}")
    a(f"v_add_u32 {v(t0)}, {v(t0)}, {v(vq)}\nv_lshl_add_u32 {v(t0)}, {v(t0)}, 7, s29\nv_lshl_add_u32 {v(t0)}, {v(t2)}, 1, {v(t0)}")
    a(f"v_mad_u32_u24 {v(aSP)}, {v(t1)}, s5, {v(t0)}")
    a(f"v_mul_u32_u24 {v(t0)}, 18, {v(t2)}\nv_bfe_u32 {v(t1)}, v0, 4, 4\nv_add_u32 {v(t0)}, {v(t0)}, {v(t1)}")
    a(f"v_lshlrev_b32 {v(t0)}, 3, {v(t0)}\nv_add_u32 {v(t0)}, {EV0+YO}, {v(t0)}\nv_lshrrev_b32 {v(t1)}, 2, {v(vr)}\ns_movk_i32 s5, {EVS}")
    a(f"v_mad_u32_u24 {v(aYR)}, {v(t1)}, s5, {v(t0)}")
    a(f"v_lshl_add_u32 {v(aG8W)}, {v(lane)}, 1, s28")
    a(f"v_lshlrev_b32 {v(t0)}, 2, {v(vq)}\nv_sub_u32 {v(t0)}, {v(vr)}, {v(t0)}\nv_add_u32 {v(t0)}, 12, {v(t0)}")
    a(f"v_lshl_add_u32 {v(aG4R)}, {v(t0)}, 3, s28")
    a(f"s_add_u32 s5, s28, {G8O}\nv_lshl_add_u32 {v(aG8R)}, {v(t0)}, 2, s5")
    a(f"v_lshl_add_u32 {v(t0)}, {v(vr)}, 1, {v(vq)}\nv_lshl_add_u32 {v(aU)}, {v(t0)}, 4, s30")
    a(f"v_mul_u32_u24 {v(t0)}, 18, {v(vq)}\nv_add_u32 {v(t0)}, {v(t0)}, {v(vr)}\nv_lshl_add_u32 {v(aYW)}, {v(t0)}, 3, s28")
    a(f"s_mov_b32 s34, {hex(f2u(LOG2E))}\ns_mov_b32 s35, 0xffff0000\ns_mov_b32 s37, 0x00010001")
    a(f"s_mov_b32 s40, 0x05040100\ns_mov_b32 s41, 0x07060302\ns_lshl_b32 s42, s4, 8\ns_add_u32 s42, s42, {U0+512}")
    a(f"s_lshr_b32 s43, s2, 7\ns_lshr_b32 s5, s4, 1\ns_mul_i32 s44, s43, s5")
    for k in range(4):
        a(f"v_bfi_b32 {v(FIX+k)}, {v(BOX[4]+k)}, 0, {v(BOX[0]+k)}")
        a(f"v_lshrrev_b32 {v(FIX+k)}, 7, {v(FIX+k)}\nv_and_b32 {v(FIX+k)}, s37, {v(FIX+k)}")
    kk = T.alloc(2); kk8 = T.alloc(2); dts = T.alloc(2)
    C = [T.alloc(2) for m in range(2)]; Cb = [T.alloc(2) for m in range(2)]
    A = [T.alloc(2) for k in range(9)]
    w1 = [T.alloc(2) for m in range(2)]; w8 = [T.alloc(2) for m in range(2)]
    xb = [T.alloc(2) for k in range(2)]
    tm = T.alloc(2); zz = T.alloc(2); ln = T.alloc(2); ln8 = T.alloc(2)
    dd = [T.alloc() for k in range(4)]
    D = T.alloc(16)
    fb = [T.alloc(4) for _ in range(8)]; NA = 4; fa = [T.alloc(4) for _ in range(NA)]
    PP = [T.alloc(2) for _ in range(6)]; g4d = T.alloc(); g8d = T.alloc(); spd = T.alloc()
    khi = T.hi
    def unpack(dlo, dhi, src):
        a(f"v_lshlrev_b32 {v(dlo)}, 16, {v(src)}\nv_and_b32 {v(dhi)}, s35, {v(src)}")
    def cmul(dst, x, w, conj=False):
        ng = "neg_hi:[1,0,0]" if conj else "neg_lo:[1,0,0]"
        a(f"v_pk_mul_f32 {v(tm,2)}, {v(x,2)}, {v(w,2)} op_sel_hi:[1,0]")
        a(f"v_pk_fma_f32 {v(dst,2)}, {v(x,2)}, {v(w,2)}, {v(tm,2)} op_sel:[1,1,0] op_sel_hi:[0,1,1] {ng}")
    a("s_cmp_eq_u32 s6, 0")
    a.wait(vm=2)
    stamp()
    a(f"v_lshlrev_b32 {v(t0)}, 16, {v(pdt)}\nv_mul_f32 {v(t0)}, s34, {v(t0)}\nv_exp_f32 {v(t0)}, {v(t0)}")
    unpack(C[0], C[1], p[2]); unpack(C[0]+1, C[1]+1, p[3])
    a(f"v_cvt_pk_bf16_f32 {v(t0)}, {v(t0)}, {v(t0)}\nv_and_b32 {v(dts)}, s35, {v(t0)}")
    a(f"v_mul_f32 {v(kk)}, s34, {v(dts)}\nv_mul_f32 {v(kk+1)}, 0.15915494, {v(dts)}")
    a("s_cbranch_scc0 LsetB")
    st = (list(a.hist))
    unpack(zz, zz+1, p[0])
    a(f"v_mul_f32 {v(zz)}, s34, {v(zz)}\nv_mul_f32 {v(zz+1)}, s34, {v(zz+1)}")
    a(f"v_exp_f32 {v(zz)}, {v(zz)}\nv_exp_f32 {v(zz+1)}, {v(zz+1)}")
    a(f"v_add_f32 {v(dts)}, {v(dts)}, {v(dts)}")
    a(f"v_cvt_pk_bf16_f32 {v(p[0])}, -{v(zz)}, -{v(zz+1)}")
    a("s_branch LsetJ")
    a.label("LsetB"); a.hist = st
    unpack(Cb[0], Cb[1], p[4]); unpack(Cb[0]+1, Cb[1]+1, p[5])
    for m in range(2): cmul(C[m], C[m], Cb[m])
    if warm:
        a("s_branch LsetJ")
        a.raw("    .p2align 12")
        a.label("Lpad1"); a("s_branch Lback"); a.raw("    s_nop 0")
    a.label("LsetJ")
    a(f"v_mul_f32 {v(kk8)}, 0x41000000, {v(kk)}\nv_mul_f32 {v(kk8+1)}, 0x41000000, {v(kk+1)}")
    def setup(m, pk):
        o = []
        sh = (lambda d, s_: f"v_lshlrev_b32 {v(d)}, 16, {v(s_)}") if m == 0 else (lambda d, s_: f"v_and_b32 {v(d)}, s35, {v(s_)}")
        o += [sh(zz, p[0]), sh(zz+1, p[1])]
        def mul2(d, x, y, bc=False, neg=False):
            if pk: return [f"v_pk_mul_f32 {v(d,2)}, {v(x,2)}, {v(y,2)}" + (" op_sel_hi:[1,0]" if bc else "") + (" neg_hi:[1,0]" if neg else "")]
            return [f"v_mul_f32 {v(d)}, {v(x)}, {v(y)}", (f"v_mul_f32_e64 {v(d+1)}, -{v(x+1)}, {v(y if bc else y+1)}" if neg else f"v_mul_f32 {v(d+1)}, {v(x+1)}, {v(y if bc else y+1)}")]
        o += mul2(ln8, zz, kk8) + mul2(ln, zz, kk)
        o += [f"v_fract_f32 {v(ln8+1)}, {v(ln8+1)}", f"v_fract_f32 {v(ln+1)}, {v(ln+1)}"]
        for (w, l_) in ((w8[m], ln8), (w1[m], ln)):
            o += [f"v_exp_f32 {v(l_)}, {v(l_)}", f"v_cos_f32 {v(w)}, {v(l_+1)}", f"v_sin_f32 {v(w+1)}, {v(l_+1)}"]
        o += mul2(w8[m], w8[m], ln8, True, True) + mul2(C[m], C[m], dts, True) + mul2(w1[m], w1[m], ln, True)
        return o
    for x in setup(0, True): a(x)
    stamp()
    nput = [0]
    def put(x, row, extra=None):
        d = dd[nput[0] & 3]; nput[0] += 1
        a(f"v_cvt_pk_bf16_f32 {v(d)}, {v(x)}, {v(x+1)}")
        a(f"ds_write_addtid_b32 {v(d)} offset:{row*EVR}")
        if extra: a(extra.pop(0))
    def stage_ops(k):
        o = []
        for ch in range(8):
            d = dd[ch & 3]
            o.append((f"v_perm_b32 {v(d)}, {v(ud[k][1]+(ch>>1))}, {v(ud[k][0]+(ch>>1))}, s{40+(ch&1)}",
                      f"ds_write_addtid_b32 {v(d)} offset:{ch*US + k*2048}"))
        return o
    for m in range(2):
        a.raw("    .p2align 3")
        put(w8[m], 23)
        cur = w8[m]
        for jj in range(2, 33):
            nxt = xb[jj & 1]
            cmul(nxt, cur, w8[m]); cur = nxt
            if jj < 32: put(cur, 22 + jj)
            if m == 0 and jj == 12:
                a("s_cmp_lg_u32 s44, 0\ns_cbranch_scc1 Lnou1")
                for e in range(2):
                    a(f"global_load_dwordx4 {v(ud[1][e],4)}, {v(ug1)}, s[8:9] offset:{1024*e}")
                a.label("Lnou1")
        w256c = cur
        ex = [f"ds_read_b128 {v(fb[ks],4)}, {v(aEVB)} offset:{22*EVR + 32*ks}" for ks in range(8)]
        if m == 1:
            ex += [f"ds_write_b64 {v(aZ)}, {v(z4,2)} offset:{QO-32}"]
        put(C[m], SROW[0], ex)
        prev = C[m]
        for k in range(1, 9):
            cmul(A[k], prev, w1[m]); prev = A[k]; put(A[k], SROW[k], ex)
        if m == 1:
            a(f"v_lshl_add_u32 {v(t0)}, {v(lane)}, 4, s28")
            ex += [f"ds_write_b128 {v(t0)}, {v(z4,4)} offset:{QO+4336}"]
        cmul(A[0], C[m], w256c, conj=True); put(A[0], SROW[256], ex)
        for k in (2, 6):
            cmul(A[k], A[k], w256c, conj=True); put(A[k], SROW[256+k])
        for m_ in range(1, 8):
            if m_ <= 3:
                cmul(A[4], A[4], w256c, conj=True); put(A[4], SROW[256*m_+4])
            cmul(A[8], A[8], w256c, conj=True); put(A[8], SROW[256*m_+8])
        assert not ex
        stamp()
        rd = lambda ks: a(f"ds_read_b128 {v(fa[ks%NA],4)}, {v(aEVA)} offset:{32*ks}")
        for ks in range(NA): rd(ks)
        if m == 0:
            fill = setup(1, False) + [f"v_lshlrev_b32 {v(vD)}, 16, {v(pD)}", f"v_cmp_eq_u32 vcc, 0, {v(lane)}", "s_nop 1", f"v_cndmask_b32 {v(vD)}, 0, {v(vD)}, vcc"]
            for _ in range(6): a(fill.pop(0))
        else:
            a("s_mov_b32 m0, s42")
            a.wait(vm=0)
            stg = stage_ops(0)
            for x in stg[:2]: a(x[0])
        for ks in range(8):
            a(f"v_mfma_f32_32x32x16_bf16 {v(D,16)}, {v(fa[ks%NA],4)}, {v(fb[ks],4)}, " + (v(D,16) if (ks or m) else "0"))
            if ks + NA < 8: rd(ks + NA)
            if m == 0:
                for _ in range(3):
                    if fill: a(fill.pop(0))
            elif ks < 4:
                for x in stg[2*ks:2*ks+2]: a(x[1])
                for x in stg[2*ks+2:2*ks+4]: a(x[0])
            if warm and m == 1 and ks == 0:
                a.raw(";PAD2")
        if m == 0: assert not fill
        stamp()
    a("s_cmp_lg_u32 s44, 0\ns_cbranch_scc1 Lnou1s")
    st = list(a.hist); lg = list(a.lgkm)
    stg = stage_ops(1)
    for g in range(2):
        for x in stg[4*g:4*g+4]: a(x[0])
        for x in stg[4*g:4*g+4]: a(x[1])
    a.label("Lnou1s"); a.hist = st
    a("s_mov_b32 m0, s28")
    tt = [D+0,D+1,D+2,D+3,D+4,D+5,D+6,D+7,D+12]
    a(f"v_add_f32 {v(tt[0])}, {v(tt[0])}, {v(vD)}")
    a(f"v_cvt_pk_bf16_f32 {v(g4d)}, {v(D+8)}, {v(D+9)}\nv_cvt_pk_bf16_f32 {v(g8d)}, {v(D+10)}, {v(D+11)}")
    for i in range(3, 9):
        pp = PP[i-3]
        a(f"v_cvt_pk_bf16_f32 {v(pp)}, {v(tt[i])}, {v(tt[i-1])}\nv_cvt_pk_bf16_f32 {v(pp+1)}, {v(tt[i-2])}, {v(tt[i-3])}")
    P1, P2, P7, P8 = PP[0]+1, PP[1]+1, PP[4], PP[5]
    a(f"v_readlane_b32 s36, {v(g4d)}, 63")
    a(f"v_mov_b32_dpp {v(spd)}, {v(P1)} row_newbcast:0 row_mask:0xf bank_mask:0xf")
    a(f"ds_write_addtid_b32 {v(g4d)} offset:{G4O + 120}")
    a(f"ds_write_b16 {v(aG8W)}, {v(g8d)} offset:{G8O + 60}\nds_write_b16_d16_hi {v(aG8W)}, {v(g8d)} offset:{G8O + 60 + 128}")
    a(f"v_mov_b32_dpp {v(spd)}, {v(P8)} row_newbcast:15 row_mask:0x8 bank_mask:0xf")
    for i in range(3, 9):
        a(f"ds_write_b64 {v(aQW)}, {v(PP[i-3],2)} offset:{16 + (i&7)*544 + (i>>3)*8}")
    a(f"ds_write_b32 {v(aQW)}, {v(P1)} offset:{16 + 544}\nds_write_b32 {v(aQW)}, {v(P2)} offset:{16 + 2*544}")
    a(f"ds_write_b32 {v(aQW)}, {v(P7)} offset:{16 + 544 + 12}\nds_write_b32 {v(aQW)}, {v(P8)} offset:{16 + 2*544 + 12}")
    a(f"ds_write_b16_d16_hi {v(aSP)}, {v(spd)} offset:16")
    a(f"s_lshr_b32 s36, s36, 16")
    for k in range(4): a(f"v_mul_u32_u24 {v(FIX+k)}, s36, {v(FIX+k)}")
    a.wait(lgkm=14)
    a("s_barrier")
    stamp()
    a("s_cmp_eq_u32 s43, 0\ns_cbranch_scc1 LconvB\ns_branch LconvA")
    conv_state = (list(a.hist), list(a.lgkm), stamp_n[0])
    def conv(role):
        a.raw("    .p2align 12" if warm else "    .p2align 3")
        a.label("Lconv" + role)
        a.hist, a.lgkm, stamp_n[0] = list(conv_state[0]), list(conv_state[1]), conv_state[2]; a.vm = []
        if warm: a("s_cbranch_execz Lback\ns_nop 0")
        tiles = [0,1,2,3,4] if role == "A" else [5,6,7]
        T = Regs(base_n)
        KF = [T.alloc(4) for _ in range(17)]
        G4F = {(dl, ph): T.alloc(4) for dl in (2,3,4) for ph in range(2)}
        G8F = {dl: T.alloc(4) for dl in range(4,8)}
        accr = [T.alloc(4) for _ in range(4)]
        ACC = {t: accr[i % 4] for i, t in enumerate(tiles)}
        WD = [T.alloc(4) for _ in range(6)]
        W4 = [T.alloc(4) for _ in range(2)]; W8 = T.alloc(4)
        UF = [T.alloc(4) for _ in range(NU)]
        yd = T.alloc(2); yo = T.alloc(4)
        S = []
        def U(b0): return ("U", b0)
        def direct(tp, s0s=range(8)):
            o = []
            for s0 in s0s:
                F = ("U", 32*(8*tp - s0) - 16, "d")
                for (tt_, s_) in ((tp+2, s0+16), (tp, s0), (tp+1, s0+8)):
                    if tt_ in tiles and s_ <= 16: o.append(("m", ("acc", tt_), ("K", s_), F))
            return o
        def wjob(tp, g4, g8, fix=False, k16=False, tag="w"):
            F16 = ("U", 256*tp - 16, tag); F24 = ("U", 256*tp - 24, tag)
            gen_, cv, push = [], [], []
            ks = ([0,1,2] if g4 else []) + ([4] if g8 else []) + ([3] if g4 else []) + ([5] if g8 else [])
            for k in ks: gen_.append(("m", ("wd", k), F16 if BOXDEF[k][2] == -16 else F24, ("box", k)))
            if fix: gen_.append(("m", ("acc", tp+4), ("fix",), F16))
            if k16: gen_.append(("m", ("acc", tp+2), ("K", 16), F16))
            if g4:
                for ph in range(2):
                    for e in range(2):
                        i = 2*ph + e
                        cv.append(f"v_cvt_pk_bf16_f32 {v(W4[ph]+2*e)}, {v(WD[0]+i)}, {v(WD[1]+i)}")
                        cv.append(f"v_cvt_pk_bf16_f32 {v(W4[ph]+2*e+1)}, {v(WD[2]+i)}, {v(WD[3]+i)}")
                for ph in range(2):
                    for dl in (2,3,4):
                        if tp+dl in tiles: push.append(("m", ("acc", tp+dl), ("w4", ph), ("G4", dl, ph)))
            if g8:
                for i in range(4): cv.append(f"v_cvt_pk_bf16_f32 {v(W8+i)}, {v(WD[4]+i)}, {v(WD[5]+i)}")
                for dl in range(4,8):
                    if tp+dl in tiles: push.append(("m", ("acc", tp+dl), ("w8",), ("G8", dl)))
            return gen_, cv, push
        def merge(*jobs):
            return tuple(sum((j[i] for j in jobs), []) for i in range(3))
        def weave(job, cover):
            g, cv, push = job
            return g + [("cv", cv)] + cover + [("flush",)] + push
        if role == "A":
            S += direct(0) + [("tile", 0)] + direct(1) + [("tile", 1)]
            S += weave(wjob(0, 1, 0), direct(2)) + [("tile", 2)]
            S += weave(wjob(1, 1, 0), direct(3)) + [("tile", 3)]
            S += weave(merge(wjob(2, 1, 0), wjob(0, 0, 1, fix=True, tag="x")), direct(4)) + [("tile", 4)]
        else:
            d4, d5 = direct(4), direct(5)
            S += weave(wjob(1, 1, 1, fix=True), d4)
            S += weave(merge(wjob(2, 1, 0, fix=True), wjob(0, 0, 1)), d5[:9])
            S += weave(wjob(3, 1, 0, fix=True, k16=True), d5[9:]) + [("tile", 5)]
            S += weave(merge(wjob(4, 1, 0), wjob(2, 0, 1, tag="x")), direct(6)) + [("tile", 6)]
            S += weave(merge(wjob(5, 1, 0), wjob(3, 0, 1, tag="x")), direct(7)) + [("tile", 7)]
        ms = [x for x in S if x[0] == "m"]
        order, last = [], {}
        for i, x in enumerate(ms):
            for op in (x[2], x[3]):
                if op[0] in ("U", "K", "G4", "G8"):
                    if op not in last: order.append(op)
                    last[op] = i
        reg, free_after, nu = {}, {}, 0
        occ = {}
        for op in order:
            if op[0] == "U":
                r_ = UF[nu % NU]; nu += 1
                free_after[op] = last[occ[r_]] if r_ in occ else -1
                occ[r_] = op; reg[op] = r_
            else:
                free_after[op] = -1
                reg[op] = KF[op[1]] if op[0] == "K" else (G4F[op[1:]] if op[0] == "G4" else G8F[op[1]])
        def ldtext(op):
            r_ = reg[op]
            if op[0] == "U": return [f"ds_read_b128 {v(r_,4)}, {v(aU)} offset:{512 + 2*op[1]}"]
            if op[0] == "K": return [f"ds_read_b64 {v(r_,2)}, {v(aQR0)} offset:{32*op[1]}", f"ds_read_b64 {v(r_+2,2)}, {v(aQR1)} offset:{32*op[1]}"]
            if op[0] == "G4": return [f"ds_read_b64 {v(r_+2*e,2)}, {v(aG4R)} offset:{G4O + 8*(16*op[1] - 2*op[2] - e - 29)}" for e in range(2)]
            return [f"ds_read2_b32 {v(r_+2*e,2)}, {v(aG8R)} offset0:{16*op[1] - 2*e - 61} offset1:{16*op[1] - 2*e - 62}" for e in range(2)]
        def opreg(op):
            if op in reg: return reg[op]
            return {"box": lambda: BOX[op[1]], "fix": lambda: FIX, "w4": lambda: W4[op[1]], "w8": lambda: W8}[op[0]]()
        issued = set(); pend = list(order)
        def issue_loads(mi, maxn, need=()):
            n = 0
            while pend and (n < maxn or any(o in pend for o in need)) and free_after[pend[0]] < mi:
                op = pend.pop(0)
                for t_ in ldtext(op): a(t_)
                n += 1
        started = set(); cvq = []; cvage = 0; post = []
        def y_write(t):
            i = tiles.index(t)
            a(f"v_cvt_pk_bf16_f32 {v(yd)}, {v(ACC[t])}, {v(ACC[t]+1)}\nv_cvt_pk_bf16_f32 {v(yd+1)}, {v(ACC[t]+2)}, {v(ACC[t]+3)}")
            a(f"ds_write_b64 {v(aYW)}, {v(yd,2)} offset:{YO + 576*i}")
            ymark[0] = len(a.lgkm); a.lgkm[-1] = {("y", t)}
            started.discard(ACC[t])
        ymark = [0]
        def y_bar(t):
            i = tiles.index(t)
            k = [j for j, d in enumerate(a.lgkm) if ("y", t) in d]
            if k: a.wait(lgkm=min(15, len(a.lgkm) - 1 - k[0]))
            a("s_barrier")
            a(f"s_cmp_ge_u32 s4, 4\ns_cbranch_scc{(i+1)&1} Lskip{role}{t}")
            st = list(a.hist); lg = list(a.lgkm)
            a(f"ds_read_b64_tr_b16 {v(yo,2)}, {v(aYR)} offset:{576*i}")
            a(f"ds_read_b64_tr_b16 {v(yo+2,2)}, {v(aYR)} offset:{576*i + 4*EVS}")
            a(f"s_add_u32 s46, s26, {hex(t*0x80000)}\ns_addc_u32 s47, s27, 0")
            a(f"global_store_dwordx4 {v(og)}, {v(yo,4)}, s[46:47]")
            a.label(f"Lskip{role}{t}")
            a.lgkm = lg; a.vm = []; a.hist = st
            stamp()
        issue_loads(0, 5)
        mi = 0
        for x in S:
            if x[0] == "cv": cvq = list(x[1]); cvage = 0; continue
            if x[0] == "flush":
                while cvq: a(cvq.pop(0))
                continue
            if x[0] == "tile":
                t = x[1]
                post.append([4, lambda t=t: y_write(t)]); post.append([8, lambda t=t: y_bar(t)])
                continue
            _, acc, A_, B_ = x
            issue_loads(mi, 0, need=(A_, B_))
            ar = WD[acc[1]] if acc[0] == "wd" else ACC[acc[1]]
            fresh = acc[0] == "wd" or ar not in started
            if acc[0] == "acc": started.add(ar)
            a(f"v_mfma_f32_16x16x32_bf16 {v(ar,4)}, {v(opreg(A_),4)}, {v(opreg(B_),4)}, " + ("0" if fresh else v(ar,4)))
            mi += 1
            for q_ in post: q_[0] -= 1
            did = False
            while post and post[0][0] <= 0:
                post.pop(0)[1](); did = True
            if did: continue
            n0 = len(pend)
            issue_loads(mi, 1)
            cvage += 1
            if cvq and cvage >= 3:
                for _ in range(1 if len(pend) != n0 else 2):
                    if cvq: a(cvq.pop(0))
        while post: post.pop(0)[1]()
        assert not pend
        print("role", role, "mfma", len(ms), "loads", len(order), "regs", T.hi, file=sys.stderr)
        stamps_out(base_n)
        amp_tail(role)
        a("s_endpgm")
    conv("B"); conv("A")
    a.label("Lend")
    a("s_endpgm")
    a.label("Lcode_end")
    hdr = open("concat_heads__ssm_conv_s4d__ssm_conv_s4__prompt.s.ref").read().split("; Override launch")[0]
    out = hdr + f"; @launch grid=(256,1,1) block=(512,1,1) lds={LDS_BYTES}\n"
    out += f'.amdgcn_target "amdgcn-amd-amdhsa--gfx950"\n.text\n.globl {KN}\n.p2align 12\n.type {KN},@function\n{KN}:\n'
    out += a.text()
    out += f""".section .rodata,"a"
.p2align 6
.amdhsa_kernel {KN}
  .amdhsa_next_free_vgpr 256
  .amdhsa_next_free_sgpr 102
  .amdhsa_accum_offset 256
  .amdhsa_group_segment_fixed_size 0
  .amdhsa_kernarg_size 152
  .amdhsa_user_sgpr_count 2
  .amdhsa_user_sgpr_kernarg_segment_ptr 1
  .amdhsa_system_sgpr_workgroup_id_x 1
.end_amdhsa_kernel
"""
    print("nops inserted:", a.nnop, "kgen regs", khi, "A-read conflicts", NCONF, file=sys.stderr)
    return out
if __name__ == "__main__":
    open("k2n.s","w").write(gen(warm=False))
    open("k2n_st.s","w").write(gen(stamps=True, warm=False))
```
